```python
import torch

def _softmax(x, axis=-1):
    return torch.softmax(x, dim=axis)
def _gelu(x):
    return torch.nn.functional.gelu(x, approximate="tanh")
def _silu(x):
    return torch.nn.functional.silu(x)
def _sigmoid(x):
    return torch.sigmoid(x)
def _layernorm(x, axis=-1, eps=1e-5):
    m = x.mean(dim=axis, keepdim=True)
    v = x.var(dim=axis, keepdim=True, unbiased=False)
    return (x - m) / torch.sqrt(v + eps)
def _scatter_add(tgt, idx, src, axis=0):
    return tgt.clone().index_add_(axis, idx, src)
def _segment_sum(src, seg, n):
    out = torch.zeros((n,) + src.shape[1:], dtype=src.dtype)
    return out.index_add_(0, seg, src)
def _pad(x, pw):
    flat = tuple(v for pair in reversed(pw) for v in pair)
    return torch.nn.functional.pad(x, flat)

kernel_name = 'standalone__mha_block_cached__near_ridge'

def setup_inputs():

    _w = (lambda a: (lambda t: t.to(torch.bfloat16) if t.is_floating_point() else t)(torch.as_tensor(a)))
    B, Sq, D = 16, 256, 448
    H, Sk, Dh = 16, 1024, 256
    return {
        "x": _w((lambda *s: torch.randn(*s, dtype=torch.bfloat16) * 0.8)(B, Sq, D)),
        "k_cache": _w((lambda *s: torch.randn(*s, dtype=torch.bfloat16) * 0.8)(B, H, Sk, Dh)),
        "v_cache": _w((lambda *s: torch.randn(*s, dtype=torch.bfloat16) * 0.05)(B, H, Sk, Dh)),
        "wq": _w((lambda *s: torch.randn(*s, dtype=torch.bfloat16) * 0.8)(D, H * Dh) * (D ** -0.5)),
        "wo": _w((lambda *s: torch.randn(*s, dtype=torch.bfloat16) * 0.05)(H * Dh, D) * ((H * Dh) ** -0.5)),
    }

def reference(x, k_cache, v_cache, wq, wo):
    B, Sq, D = x.shape
    H, Dh = 16, 256
    q = (lambda x, *d: x.permute(*d))((x @ wq).reshape(B, Sq, H, Dh), 0, 2, 1, 3)
    scores = torch.einsum("bhqd,bhkd->bhqk", q, k_cache) * (Dh ** -0.5)
    p = _softmax(scores, axis=-1)
    o = torch.einsum("bhqk,bhkd->bhqd", p, v_cache)
    return (lambda x, *d: x.permute(*d))(o, 0, 2, 1, 3).reshape(B, Sq, H * Dh) @ wo
```

```python
import re


def regs(op):
    op = op.strip()
    if op.startswith('-'):
        op = op[1:]
    m = re.fullmatch(r'([vas])\[(\d+):(\d+)\]', op)
    if m:
        return [f"{m.group(1)}{i}" for i in range(int(m.group(2)), int(m.group(3)) + 1)]
    if re.fullmatch(r'[vas]\d+', op):
        return [op]
    if op in ('vcc', 'm0', 'exec', 'scc'):
        return [op]
    return []


def R(f, lo, n=1):
    return f"{f}{lo}" if n == 1 else f"{f}[{lo}:{lo+n-1}]"


class Ins:
    __slots__ = ('t', 'k', 'r', 'w', 'tag', 'tags', 'force', 'cpair', 'st', 'note')

    def __init__(self, t, k, r=(), w=(), tag=None, tags=None, force=None):
        self.t, self.k = t, k
        self.r, self.w = set(r), set(w)
        self.tag, self.tags, self.force = tag, tags, force
        self.cpair = None
        self.st = False
        self.note = ''

    def cost(self):
        return {'T': 2, 'V': 1, 'D': 1, 'G': 1}.get(self.k, 0)


def mfma(d, a, b, c):
    i = Ins(f"v_mfma_f32_16x16x32_bf16 {d}, {a}, {b}, {c}", 'M', regs(a) + regs(b) + regs(c), regs(d))
    i.cpair = (tuple(regs(d)), tuple(regs(c)), set(regs(a) + regs(b)))
    return i


TRANS = ('v_exp_f32', 'v_rcp_f32', 'v_log_f32')


def V(op, d, *src):
    r = []
    for s in src:
        r += regs(s)
    w = regs(d)
    if op.startswith('v_permlane'):
        r += regs(d)
        w += regs(src[0])
    if op.startswith('v_cndmask') and len(src) == 2:
        r.append('vcc')
    if op == 'v_writelane_b32':
        r += regs(d)
    k = 'T' if op in TRANS else 'V'
    return Ins(f"{op} {d}, " + ", ".join(src), k, r, w)


def S(op, *ops):
    r, w = [], []
    if op.startswith('s_cmp') or op.startswith('s_bitcmp'):
        for s in ops:
            r += regs(s)
        w = ['scc']
    else:
        w = regs(ops[0])
        for s in ops[1:]:
            r += regs(s)
    return Ins(f"{op} " + ", ".join(ops), 'S', r, w)


def dsr(op, d, addr, off, tag=None):
    assert 0 <= off < 65536, off
    return Ins(f"{op} {d}, {addr} offset:{off}", 'D', regs(addr), regs(d), tag=tag)


def dma(voff, srd, soff, imm, tag, pol=''):
    assert 0 <= imm < 4096
    t = f"buffer_load_dwordx4 {voff}, {srd}, {soff} offen"
    if imm:
        t += f" offset:{imm}"
    if pol:
        t += " " + pol
    return Ins(t + " lds", 'G', regs(voff) + regs(srd) + regs(soff) + ['m0'], [], tag=tag)


def gload(d, voff, srd, soff, imm, tag, pol='', op='buffer_load_dwordx4'):
    t = f"{op} {d}, {voff}, {srd}, {soff} offen"
    if imm:
        t += f" offset:{imm}"
    if pol:
        t += " " + pol
    return Ins(t, 'G', regs(voff) + regs(srd) + regs(soff), regs(d), tag=tag)


def gstore(d, voff, srd, soff, imm, tag, pol='', op='buffer_store_dwordx4'):
    t = f"{op} {d}, {voff}, {srd}, {soff} offen"
    if imm:
        t += f" offset:{imm}"
    if pol:
        t += " " + pol
    i = Ins(t, 'G', regs(d) + regs(voff) + regs(srd) + regs(soff), [], tag=tag)
    i.st = set(regs(d))
    return i


def vmwait(tags, force=None):
    return Ins("<vmwait>", 'VW', tags=list(tags), force=force)


def dswait(tags):
    return Ins("<dswait>", 'DW', tags=list(tags))


def raw(t, k='S', r=(), w=()):
    return Ins(t, k, r, w)


def bar():
    return Ins("s_barrier", 'B')


def label(n):
    return Ins(f"{n}:", 'L')


def br(op, target):
    return Ins(f"{op} {target}", 'J')


def nop(n):
    i = Ins(f"s_nop {n}", 'N')
    i.force = n
    return i


class Sched:
    def __init__(self, name=''):
        self.name = name
        self.m = []
        self.fixed = {}
        self.scal = {}
        self.post = {}
        self.queues = {}
        self.over = 0

    def add(self, ins):
        self.m.append(ins)
        return len(self.m) - 1

    def at(self, g, *ins):
        self.fixed.setdefault(g, []).extend(ins)

    def sc(self, g, *ins):
        self.scal.setdefault(g, []).extend(ins)

    def after(self, g, *ins):
        self.post.setdefault(g, []).extend(ins)

    def q(self, qn, ins, early=-1, dead=10**9):
        self.queues.setdefault(qn, []).append([ins, early, dead])

    def free(self, g):
        return 2 - sum(i.cost() for i in self.fixed.get(g, []))

    def find(self, g, need=2, first=False, step=1):
        while True:
            if (not first or not self.fixed.get(g)) and self.free(g) >= need:
                return g
            g += step

    def emit(self, flush=True):
        out = []
        n = len(self.m)
        for qn, q in self.queues.items():
            d = 10**9
            for it in reversed(q):
                d = min(d, it[2])
                it[2] = d
        for g in range(-1, n):
            if g >= 0:
                out.append(self.m[g])
            out.extend(self.scal.get(g, []))
            fx = self.fixed.get(g, [])
            out.extend(fx)
            cap = 2 - sum(i.cost() for i in fx)
            if g == -1:
                cap = 0
            progressed = True
            while progressed:
                progressed = False
                cand = None
                for qn, q in self.queues.items():
                    if not q:
                        continue
                    ins, early, dead = q[0]
                    if dead <= g + 1:
                        cand = (0, dead, qn)
                        break
                    if early <= g and ins.cost() <= cap:
                        c = (1, dead, qn)
                        if cand is None or c < cand:
                            cand = c
                if cand is not None:
                    ins, early, dead = self.queues[cand[2]].pop(0)
                    if early > g:
                        raise Exception(f"{self.name}: forced before ready: {ins.t} early {early} gap {g}")
                    if ins.cost() > cap:
                        self.over += ins.cost() - max(cap, 0)
                    cap -= ins.cost()
                    out.append(ins)
                    progressed = True
            out.extend(self.post.get(g, []))
        left = sum(len(q) for q in self.queues.values())
        if left:
            assert flush, f"{self.name}: {left} fillers left"
            for qn, q in self.queues.items():
                for ins, early, dead in q:
                    out.append(ins)
                    self.over += ins.cost()
            self.queues = {}
        for g in list(self.fixed) + list(self.scal) + list(self.post):
            assert -1 <= g < n, (self.name, g, n)
        return out


def insert_waits(prog, verbose=False):
    out = []
    ds = []
    vm = []
    vm_done = 0
    last_m = None
    maxvm = 0

    def add_wait(pos, vmn=None, lg=None):
        nonlocal out, ds, last_m
        for p in (pos, pos - 1):
            if 0 <= p < len(out) and out[p].k == 'W' and (p == pos - 1 or p == pos):
                w = out[p]
                if vmn is not None:
                    w.force[0] = vmn if w.force[0] is None else min(w.force[0], vmn)
                if lg is not None:
                    w.force[1] = lg if w.force[1] is None else min(w.force[1], lg)
                return
        w = Ins("<wait>", 'W')
        w.force = [vmn, lg]
        out.insert(pos, w)
        ds = [(i, p + 1 if p >= pos else p) for i, p in ds]
        if last_m is not None and last_m >= pos:
            last_m += 1

    for ins in prog:
        if ins.k == 'VW':
            idx = [j for j, v in enumerate(vm) if v.tag in ins.tags]
            missing = [t for t in ins.tags if not any(v.tag == t for v in vm)]
            assert not missing, f"vmwait on never issued {missing}"
            need = max(idx) + 1
            n = len(vm) - need
            if ins.force is not None:
                assert ins.force <= n or need <= vm_done, (ins.tags, ins.force, n)
                n = ins.force
            elif need <= vm_done:
                continue
            assert n <= 63
            add_wait(len(out), vmn=n)
            vm_done = max(vm_done, len(vm) - n)
            continue
        if ins.k == 'DW':
            idx = [j for j, (d, p) in enumerate(ds) if d.tag in ins.tags]
            if idx:
                j = max(idx)
                add_wait(len(out), lg=len(ds) - 1 - j)
                ds = ds[j + 1:]
            continue
        if ins.k == 'WA':
            add_wait(len(out), vmn=0 if 'vm' in ins.tags else None, lg=0 if 'lg' in ins.tags else None)
            if 'vm' in ins.tags:
                vm_done = len(vm)
            if 'lg' in ins.tags:
                ds = []
            continue
        touched = ins.r | ins.w
        hit = [j for j, (d, p) in enumerate(ds) if d.w & (ins.r if ins.k == 'D' else touched)]
        if hit:
            j = max(hit)
            pos = len(out)
            if ins.k == 'M' and last_m is not None and ds[j][1] < last_m:
                pos = last_m + 1
            n = sum(1 for (d, p) in ds[j + 1:] if p < pos)
            add_wait(pos, lg=n)
            ds = ds[j + 1:]
        hit = [j for j in range(vm_done, len(vm)) if vm[j].w & touched]
        if hit:
            j = max(hit)
            n = len(vm) - 1 - j
            add_wait(len(out), vmn=n)
            vm_done = j + 1
        out.append(ins)
        if ins.k == 'D':
            ds.append((ins, len(out) - 1))
            assert len(ds) <= 15, "too many DS ops outstanding"
        elif ins.k == 'G':
            vm.append(ins)
            maxvm = max(maxvm, len(vm) - vm_done)
        elif ins.k == 'M':
            last_m = len(out) - 1
        elif ins.k in ('L', 'J', 'B'):
            last_m = None
    for w in out:
        if w.k == 'W':
            p = []
            if w.force[0] is not None:
                p.append(f"vmcnt({w.force[0]})")
            if w.force[1] is not None:
                p.append(f"lgkmcnt({w.force[1]})")
            w.t = "s_waitcnt " + " ".join(p)
    if verbose:
        print("max VM possibly outstanding", maxvm)
    return out


def waitall(*which):
    return Ins("<waitall>", 'WA', tags=list(which))


def check_hazards(prog, fix=True, verbose=True):
    out = []
    t = 0
    last_mt = -100
    vw = {}
    tw = {}
    mw = {}
    mc = {}
    sw = {}
    m0t = -100
    stt = {}
    nfix = 0
    for ins in prog:
        if ins.k == 'L':
            out.append(ins)
            continue
        ti = t + 1
        if ins.k == 'M':
            ti = max(ti, last_mt + 4)
        need = ti
        why = None

        def req(tp, ws, w):
            nonlocal need, why
            if tp + ws + 1 > need:
                need = tp + ws + 1
                why = w
        isv = ins.k in ('V', 'T')
        if ins.k == 'M':
            d, c, ab = ins.cpair
            for r in ins.r:
                if r in vw:
                    req(vw[r], 2, f"VALU->MFMA {r}")
            for r in ab:
                if r in mw:
                    req(mw[r][0], 8, f"MFMA D->A/B {r}")
            for r in c:
                if r in mw and mw[r][1] != c:
                    req(mw[r][0], 6, f"MFMA D->C partial {r}")
        if isv:
            for r in ins.r | ins.w:
                if r in mw:
                    req(mw[r][0], 8, f"MFMA D->VALU {r}")
            for r in ins.w:
                if r in mc:
                    req(mc[r], 3, f"MFMA C WAR {r}")
                if r in stt:
                    req(stt[r], 2, f"store WAR {r}")
            if ins.k == 'V':
                for r in ins.r:
                    if r in tw:
                        req(tw[r], 1, f"trans->VALU {r}")
            for r in ins.r:
                if r in sw:
                    req(sw[r], 4 if 'lane' in ins.t else 2, f"VALU sgpr->VALU {r}")
            if ins.t.startswith('v_permlane'):
                for r in ins.r:
                    if r in vw:
                        req(vw[r], 2, f"VALU->permlane {r}")
            if ins.t.startswith('v_readfirstlane') or ins.t.startswith('v_readlane'):
                for r in ins.r:
                    if r in vw:
                        req(vw[r], 1, f"VALU->readlane {r}")
        if ins.k in ('D', 'G'):
            for r in ins.r | ins.w:
                if r in mw:
                    req(mw[r][0], 8, f"MFMA D->mem {r}")
            for r in ins.w:
                if r in stt:
                    req(stt[r], 1, f"store WAR(load) {r}")
            if ins.k == 'G':
                for r in ins.r:
                    if r in sw:
                        req(sw[r], 5, f"VALU sgpr->VMEM {r}")
                if 'm0' in ins.r:
                    req(m0t, 1, "m0->lds dma")
        if need > ti:
            k = need - (t + 1)
            if ins.k == 'M':
                k = need - (t + 1)
            assert fix, f"hazard: {why} at {ins.t}"
            if verbose:
                print(f"  hazard fix s_nop {k-1}: {why} before {ins.t}")
            nfix += 1
            while k > 0:
                kk = min(k, 16)
                out.append(nop(kk - 1))
                k -= kk
            ti = need
        t = ti
        if ins.k == 'N':
            t += ins.force
        if ins.k == 'M':
            last_mt = t
            d, c, ab = ins.cpair
            for r in d:
                mw[r] = (t, d)
                vw.pop(r, None)
            for r in c:
                mc[r] = t
        elif isv:
            for r in ins.w:
                if r[0] in 'va' and r != 'vcc':
                    vw[r] = t
                    mw.pop(r, None)
                    if ins.k == 'T':
                        tw[r] = t
                    else:
                        tw.pop(r, None)
                else:
                    sw[r] = t
        elif ins.k == 'S':
            if 'm0' in ins.w:
                m0t = t
            for r in ins.w:
                sw.pop(r, None)
        if ins.k == 'G' and ins.st:
            for r in ins.st:
                stt[r] = t
        out.append(ins)
    return out, nfix


def text(prog):
    o = []
    for i in prog:
        if i.k == 'L':
            o.append(i.t)
        else:
            o.append("    " + i.t + (f"   ; {i.note}" if i.note else ""))
    return "\n".join(o) + "\n"
```

```python
import sys, os, struct
sys.path.insert(0, os.path.dirname(os.path.abspath(__file__)))
from asmlib import *

NAME = "standalone__mha_block_cached__near_ridge"
SLOT = 16384


def fbits(x):
    return "0x%08x" % struct.unpack("<I", struct.pack("<f", x))[0]


class Cfg:
    rot = "2g"
    kvpol = "nt"
    wpol = ""
    stpol = ""
    rdpol = ""
    stamps = False
    thr_hi = 2.0 ** 20
    thr_lo = 2.0 ** -40
    codetouch = True


def Q(t, qb): return 16 * t + 4 * qb
def Sx(kb, qb): return 128 + 16 * kb + 4 * qb
def P(qb): return 160 + 4 * qb
def CI(qb): return 176 + 4 * qb
def B(n): return 192 + 4 * n
L0, LT0, TMP = 236, 240, 244
KA, VA, VKV, VX, VS = 245, 247, 251, 252, 253
XA, WLO, WHI, VW_ = 247, 249, 254, 244
def O(db, qb): return 16 * db + 4 * qb
def v4(n): return R('v', n, 4)
def v2(n): return R('v', n, 2)
def a4(n): return R('a', n, 4)
def v1(n): return f"v{n}"

SX, SW, SK, SV, SWO, SWS = "s[8:11]", "s[12:15]", "s[16:19]", "s[20:23]", "s[24:27]", "s[28:31]"
S_WAVE, S_B, S_H, S_C, S_HI = "s3", "s4", "s5", "s6", "s7"
S_W1K, S_XB, S_KO, S_VO, S_LOOP, S_RET, S_T0, S_T1 = "s32", "s33", "s34", "s35", "s36", "s37", "s38", "s39"
S_LO, S_RT = "s47", "s52"
def S_TAB(k): return "0" if k == 0 else f"s{39+k}"
def S_SIG(p): return f"s{72+p}"
def S_ST(qb): return f"s{48+qb}"
S_XBASE = ("s58", "s59")

WSLOT = [2, 3, 8, 9, 2, 3, 8, 9, 2, 3, 8, 6, 7, 1]
TSLOT = [8, 0, 2, 4, 6, 8, 0]


class Gen:
    def __init__(self, cfg):
        self.c = cfg
        self.stubs = []
        self.nstamp = 0

    def stamp(self):
        if not self.c.stamps:
            return []
        k = self.nstamp
        self.nstamp += 1
        assert k < 18
        return [raw("s_memrealtime s[98:99]"), waitall('lg'), S("s_mov_b32", f"s{80+k}", "s98")]

    def place_dma(self, sc, g, m0imm, ins, base=S_W1K):
        sc.sc(g - 1, S("s_add_u32", "m0", base, hex(m0imm)))
        sc.at(g, ins)

    def w_dma(self, s):
        sl = WSLOT[s]
        return [(sl * SLOT + cp * 4096 - cp * 128, dma(v1(VW_), SW, S_T0, cp * 128, f"W{s}", self.c.wpol), S_W1K)
                for cp in range(4)]

    def w_pre(self, s):
        o = [S("s_lshl_b32", S_T0, S_SIG(s >> 1), "12")]
        if s & 1:
            o.append(S("s_add_u32", S_T0, S_T0, hex(32 * 8192)))
        return o

    def x_dma(self, p):
        return [((p & 1) * 32768 + oc * 1024, dma(v1(VX), SX, S_TAB(oc), 0, f"X{p}", self.c.wpol), S_XB)
                for oc in range(8)]

    def x_pre(self, p):
        return [S("s_add_u32", "s8", S_XBASE[0], S_SIG(p)), S("s_addc_u32", "s9", S_XBASE[1], "0")]

    def kv_dma(self, which, tile, slot):
        srd, so = (SK, S_KO) if which == 'K' else (SV, S_VO)
        return [(slot * SLOT + cp * 4096 - cp * 128, dma(v1(VKV), srd, so, cp * 128, f"{which}{tile}", self.c.kvpol), S_W1K)
                for cp in range(4)]

    def kv_post(self, which):
        so = S_KO if which == 'K' else S_VO
        return [S("s_add_u32", so, so, hex(SLOT))]

    def wo_dma(self, c):
        return [(TSLOT[c] * SLOT + k * 4096, dma(v1(VX), SWO, S_TAB(k), 0, f"T{c}", self.c.wpol), S_W1K)
                for k in range(8)]

    def wo_post(self):
        return [S("s_add_u32", "s24", "s24", "128"), S("s_addc_u32", "s25", "s25", "0"),
                S("s_sub_u32", "s26", "s26", "128")]

    def dma_run(self, sc, gaps, groups):
        gaps = list(gaps)
        gi = 0
        for pre, lst, post in groups:
            g0 = gaps[gi]
            for k, p in enumerate(pre):
                sc.sc(g0 - 1 - len(pre) + k, p)
            for (m0, ins, base) in lst:
                g = gaps[gi]
                gi += 1
                self.place_dma(sc, g, m0, ins, base)
            for k, p in enumerate(post):
                sc.sc(g + 1 + k, p)
        return gi

    def kread(self, buf, kb, t, slot, ka=KA, base=0):
        return dsr("ds_read_b128", v4(B(buf)), v1(ka + (t & 1)), slot * SLOT - base + (t >> 1) * 4096 + kb * 2048)

    def trpair(self, buf, areg, off, step):
        return [dsr("ds_read_b64_tr_b16", v2(B(buf)), v1(areg), off),
                dsr("ds_read_b64_tr_b16", v2(B(buf) + 2), v1(areg), off + step)]

    def prologue(self):
        c = self.c
        p = []
        A = p.append
        A(S("s_cmp_ge_u32", "s2", "0x100"))
        A(br("s_cbranch_scc1", "L_end"))
        if c.stamps:
            A(raw("s_memrealtime s[98:99]"))
        A(raw("s_load_dwordx4 s[60:63], s[0:1], 0", w=regs("s[60:63]")))
        A(raw("s_load_dwordx4 s[64:67], s[0:1], 16", w=regs("s[64:67]")))
        A(raw("s_load_dwordx2 s[68:69], s[0:1], 32", w=regs("s[68:69]")))
        A(raw("s_load_dwordx2 s[70:71], s[0:1], 56", w=regs("s[70:71]")))
        A(V("v_lshrrev_b32", "v1", "6", "v0"))
        A(V("v_and_b32", "v0", "63", "v0"))
        A(V("v_readfirstlane_b32", S_WAVE, "v1"))
        A(S("s_and_b32", "s54", "s2", "7"))
        A(S("s_lshr_b32", "s55", "s2", "3"))
        A(S("s_and_b32", "s56", "s54", "3"))
        A(S("s_lshl_b32", "s56", "s56", "2"))
        A(S("s_and_b32", "s57", "s55", "3"))
        A(S("s_add_u32", S_B, "s56", "s57"))
        A(S("s_lshr_b32", "s56", "s54", "2"))
        A(S("s_lshl_b32", "s56", "s56", "3"))
        A(S("s_lshr_b32", "s57", "s55", "2"))
        A(S("s_add_u32", S_H, "s56", "s57"))
        if c.codetouch:
            A(S("s_cmp_lg_u32", S_WAVE, "0"))
            A(br("s_cbranch_scc1", "L_notouch"))
            A(raw("s_getpc_b64 s[56:57]", w=["s56", "s57"]))
            A(S("s_and_b32", "s54", "s55", "7"))
            A(S("s_lshl_b32", "s54", "s54", "13"))
            A(V("v_lshlrev_b32", "v1", "7", "v0"))
            A(V("v_add_u32", "v1", "s54", "v1"))
            A(V("v_min_u32", "v1", "s53", "v1"))
            p[-1] = None
            p.pop()
            A(raw("v_min_u32 v1, CODE_SPAN, v1", 'V', r=["v1"], w=["v1"]))
            A(Ins("global_load_dword v192, v1, s[56:57]", 'G', ["v1", "s56", "s57"], ["v192"], tag="code"))
            A(label("L_notouch"))
        if c.rot == "none":
            A(S("s_mov_b32", "s72", "0"))
        elif c.rot == "2g":
            A(S("s_xor_b32", "s54", S_B, S_H))
            A(S("s_and_b32", "s54", "s54", "1"))
            A(S("s_mul_i32", "s72", "s54", hex(4 * 128)))
        else:
            A(S("s_and_b32", "s54", S_H, "7"))
            A(S("s_and_b32", "s55", S_B, "3"))
            A(S("s_lshl_b32", "s55", "s55", "1"))
            A(S("s_add_u32", "s54", "s54", "s55"))
            A(S("s_cmp_ge_u32", "s54", "7"))
            A(S("s_cselect_b32", "s55", "7", "0"))
            A(S("s_sub_u32", "s54", "s54", "s55"))
            A(S("s_lshl_b32", "s72", "s54", "7"))
        A(V("v_lshrrev_b32", "v2", "3", "v0"))
        A(V("v_and_b32", "v3", "7", "v0"))
        A(V("v_and_b32", "v4", "6", "v2"))
        A(V("v_xor_b32", "v4", "v3", "v4"))
        A(V("v_lshlrev_b32", "v4", "4", "v4"))
        A(V("v_mul_u32_u24", v1(VX), "0x380", "v2"))
        A(V("v_add_u32", v1(VX), v1(VX), "v4"))
        A(V("v_lshrrev_b32", "v5", "2", "v0"))
        A(V("v_and_b32", "v5", "4", "v5"))
        A(V("v_xor_b32", "v5", "v3", "v5"))
        A(V("v_lshlrev_b32", "v5", "4", "v5"))
        A(V("v_lshl_add_u32", v1(VW_), "v2", "13", "v5"))
        A(S("s_lshl_b32", "s54", S_WAVE, "16"))
        A(V("v_add_u32", v1(VW_), "s54", v1(VW_)))
        A(S("s_lshl_b32", S_W1K, S_WAVE, "10"))
        A(S("s_lshl_b32", "s54", S_WAVE, "13"))
        A(S("s_add_u32", S_XB, "s54", "0x10000"))
        for k in range(1, 8):
            A(S("s_mov_b32", S_TAB(k), hex(k * 7168)))
        A(raw("s_waitcnt lgkmcnt(0)"))
        if c.stamps:
            A(S("s_mov_b32", "s80", "s98"))
            self.nstamp = 1
        A(S("s_lshl_b32", "s54", S_H, "9"))
        A(S("s_add_u32", "s12", "s66", "s54"))
        A(S("s_addc_u32", "s13", "s67", "0"))
        A(S("s_sub_u32", "s14", hex(448 * 8192), "s54"))
        A(S("s_mov_b32", "s15", "0x20000"))
        p += self.w_pre(0)
        for (m0, ins, base) in self.w_dma(0):
            A(S("s_add_u32", "m0", base, hex(m0)))
            A(nop(0))
            A(ins)
        A(S("s_mul_i32", "s54", S_B, hex(229376)))
        A(S("s_mul_i32", "s55", S_WAVE, hex(57344)))
        A(S("s_add_u32", "s54", "s54", "s55"))
        A(S("s_add_u32", S_XBASE[0], "s60", "s54"))
        A(S("s_addc_u32", S_XBASE[1], "s61", "0"))
        A(S("s_mov_b32", "s10", hex(57344 - 768)))
        A(S("s_mov_b32", "s11", "0x20000"))
        p += self.x_pre(0)
        for (m0, ins, base) in self.x_dma(0):
            A(S("s_add_u32", "m0", base, hex(m0)))
            A(nop(0))
            A(ins)
        for k in range(1, 7):
            A(S("s_add_u32", S_SIG(k), S_SIG(k - 1), "128"))
            A(S("s_cmp_ge_u32", S_SIG(k), hex(7 * 128)))
            A(S("s_cselect_b32", S_SIG(k), "0", S_SIG(k)))
        for what in (("W", 1), ("X", 1), ("W", 2)):
            pre, lst = (self.w_pre(what[1]), self.w_dma(what[1])) if what[0] == "W" else (self.x_pre(what[1]), self.x_dma(what[1]))
            p += pre
            for (m0, ins, base) in lst:
                A(S("s_add_u32", "m0", base, hex(m0)))
                A(nop(0))
                A(ins)
        A(S("s_lshl_b32", "s54", S_B, "4"))
        A(S("s_add_u32", "s54", "s54", S_H))
        A(S("s_lshl_b32", "s55", "s54", "19"))
        A(S("s_add_u32", "s16", "s62", "s55"))
        A(S("s_addc_u32", "s17", "s63", "0"))
        A(S("s_mov_b32", "s18", hex(524288)))
        A(S("s_mov_b32", "s19", "0x20000"))
        A(S("s_add_u32", "s20", "s64", "s55"))
        A(S("s_addc_u32", "s21", "s65", "0"))
        A(S("s_mov_b32", "s22", hex(524288)))
        A(S("s_mov_b32", "s23", "0x20000"))
        A(S("s_mul_i32", "s54", S_H, hex(256 * 896)))
        A(S("s_mul_i32", "s55", S_WAVE, hex(8 * 896)))
        A(S("s_add_u32", "s54", "s54", "s55"))
        A(S("s_add_u32", "s24", "s68", "s54"))
        A(S("s_addc_u32", "s25", "s69", "0"))
        A(S("s_sub_u32", "s26", hex(4096 * 896), "s54"))
        A(S("s_mov_b32", "s27", "0x20000"))
        A(S("s_mul_i32", "s54", S_B, hex(3670016)))
        A(S("s_mul_i32", "s55", S_WAVE, hex(917504)))
        A(S("s_add_u32", "s54", "s54", "s55"))
        A(S("s_lshl_b32", "s55", S_H, "11"))
        A(S("s_add_u32", "s54", "s54", "s55"))
        A(S("s_add_u32", "s28", "s70", "s54"))
        A(S("s_addc_u32", "s29", "s71", "0"))
        A(S("s_mov_b32", "s30", hex(917504)))
        A(S("s_mov_b32", "s31", "0x20000"))
        for qb in range(4):
            A(S("s_mov_b32", S_ST(qb), hex(qb * 229376)))
        A(S("s_mov_b32", S_KO, "0"))
        A(S("s_mov_b32", S_VO, "0"))
        A(S("s_mov_b32", S_C, fbits(1.4426950408889634 / 16.0)))
        A(S("s_mov_b32", S_HI, fbits(c.thr_hi)))
        A(S("s_mov_b32", S_LO, fbits(c.thr_lo)))
        A(V("v_lshl_add_u32", v1(VKV), "v2", "9", "v4"))
        A(S("s_lshl_b32", "s54", S_WAVE, "12"))
        A(V("v_add_u32", v1(VKV), "s54", v1(VKV)))
        A(V("v_and_b32", "v2", "15", "v0"))
        A(V("v_lshrrev_b32", "v3", "4", "v0"))
        A(V("v_and_b32", "v4", "6", "v0"))
        A(V("v_xor_b32", "v4", "v3", "v4"))
        A(V("v_lshlrev_b32", "v4", "4", "v4"))
        A(V("v_lshl_add_u32", v1(KA), "v2", "7", "v4"))
        A(V("v_xor_b32", v1(KA + 1), "64", v1(KA)))
        A(V("v_add_u32", v1(XA), S_XB, v1(KA)))
        A(V("v_add_u32", v1(XA + 1), S_XB, v1(KA + 1)))
        A(V("v_bfe_u32", "v4", "v0", "2", "2"))
        A(V("v_lshlrev_b32", "v4", "7", "v4"))
        A(V("v_lshl_add_u32", "v4", "v3", "10", "v4"))
        A(V("v_lshrrev_b32", "v5", "1", "v0"))
        A(V("v_and_b32", "v5", "4", "v5"))
        A(V("v_and_or_b32", "v5", "v0", "3", "v5"))
        A(V("v_lshl_add_u32", v1(WLO), "v5", "4", "v4"))
        A(V("v_xor_b32", v1(WLO + 1), "64", v1(WLO)))
        A(V("v_add_u32", v1(WHI), hex(6 * SLOT), v1(WLO)))
        A(V("v_add_u32", v1(WHI + 1), hex(6 * SLOT), v1(WLO + 1)))
        A(V("v_lshrrev_b32", "v4", "2", "v2"))
        A(V("v_lshlrev_b32", "v4", "9", "v4"))
        A(V("v_and_b32", "v5", "3", "v0"))
        A(V("v_lshl_add_u32", "v4", "v5", "6", "v4"))
        A(V("v_lshl_add_u32", v1(VS), "v3", "4", "v4"))
        return p

    def wread(self, n, s, blk):
        t, u = blk >> 1, blk & 1
        sl = WSLOT[s]
        areg, base = (WLO, 0) if sl < 4 else (WHI, 6)
        off = (sl - base) * SLOT + (t >> 1) * 4096 + u * 8
        return self.trpair(8 + n % 3, areg + (t & 1), off, 512)

    def xread(self, p, tt, qb):
        return dsr("ds_read_b128", a4(128 + 32 * (p % 4) + 16 * tt + 4 * qb), v1(XA + tt),
                   (p & 1) * 32768 + qb * 2048, tag=f"xr{p}")

    def qacc(self, blk, qb):
        t, u = blk >> 1, blk & 1
        if t < 4:
            return a4(32 * t + 16 * u + 4 * qb)
        return v4(Q(t, qb)) if u == 0 else v4(128 + 16 * (t - 4) + 4 * qb)

    def qk_part(self, sc, base, slot, cinit, ka=KA, kbase=0):
        assert len(sc.m) == base
        for kb in range(2):
            for qb in range(4):
                for t in range(8):
                    buf = t if kb == 0 else (8 + t if t < 2 else t - 2)
                    cc = (v4(CI(qb)) if cinit else "0") if t == 0 else v4(Sx(kb, qb))
                    sc.add(mfma(v4(Sx(kb, qb)), v4(B(buf)), v4(Q(t, qb)), cc))
        sc.at(base + 0, self.kread(8, 1, 0, slot, ka, kbase))
        sc.at(base + 1, self.kread(9, 1, 1, slot, ka, kbase))
        for t in range(2, 8):
            sc.at(base + 22 + t, self.kread(t - 2, 1, t, slot, ka, kbase))

    def softmax(self, sc, base, last_gap, first=False):
        rest = []
        for kb in range(2):
            for qb in range(4):
                g = base + 32 * kb + 8 * qb + 9
                gs = []
                for r in range(4):
                    e = V("v_exp_f32", v1(Sx(kb, qb) + r), v1(Sx(kb, qb) + r))
                    g = sc.find(g, need=2, first=True)
                    if g > last_gap:
                        rest.append(e)
                        gs.append(None)
                    else:
                        sc.at(g, e)
                        gs.append(g)
                s0 = Sx(kb, qb)
                lt = v1(LT0 + qb)
                if kb == 0:
                    adds = [(V("v_add_f32", lt, v1(s0), v1(s0 + 1)), 1), (V("v_add_f32", lt, lt, v1(s0 + 2)), 2),
                            (V("v_add_f32", lt, lt, v1(s0 + 3)), 3)]
                else:
                    adds = [(V("v_add_f32", lt, lt, v1(s0 + r)), r) for r in range(4)]
                for a, r in adds:
                    if gs[r] is None or rest:
                        rest.append(a)
                    else:
                        sc.q('sum', a, early=gs[r] + 1)
        chk = [V("v_max3_f32", v1(TMP), v1(LT0), v1(LT0 + 1), v1(LT0 + 2)),
               V("v_max_f32", v1(TMP), v1(TMP), v1(LT0 + 3)),
               V("v_cmp_lt_f32", "vcc", S_HI, v1(TMP))]
        if first:
            chk += [V("v_min3_f32", v1(TMP), v1(LT0), v1(LT0 + 1), v1(LT0 + 2)),
                    V("v_min_f32", v1(TMP), v1(TMP), v1(LT0 + 3)),
                    V("v_cmp_gt_f32", "s[54:55]", S_LO, v1(TMP)),
                    S("s_or_b64", "vcc", "vcc", "s[54:55]")]
        for a in chk:
            if rest:
                rest.append(a)
            else:
                sc.q('sum', a, early=0)
        return rest

    def cvtP(self, kb, qb, pbase=None):
        d = (P(qb) if pbase is None else pbase + 4 * qb) + 2 * kb
        s = Sx(kb, qb)
        return [V("v_cvt_pk_bf16_f32", v1(d), v1(s), v1(s + 1)), V("v_cvt_pk_bf16_f32", v1(d + 1), v1(s + 2), v1(s + 3))]

    def rare_branch(self, first=False, last=False):
        k = len(self.stubs)
        self.stubs.append((first, last))
        return [br("s_cbranch_vccnz", f"L_stub{k}"), label(f"L_ret{k}")]

    def qproj(self):
        sc = Sched("qproj")
        frs = [(s, blk) for s in range(10) for blk in range(16)] + [(s, blk) for blk in range(16) for s in range(10, 14)]
        done = {}
        for n, (s, blk) in enumerate(frs):
            for j in range(4):
                qb = j if n & 1 else 3 - j
                acc = self.qacc(blk, qb)
                xb = a4(128 + 32 * ((s >> 1) % 4) + 16 * (s & 1) + 4 * qb)
                i = sc.add(mfma(acc, v4(B(8 + n % 3)), xb, "0" if s == 0 else acc))
                if s == 13:
                    done[(blk, qb)] = i
            if n >= 3:
                sc.at(4 * n - 9, *self.wread(n, s, blk))
        base = len(sc.m)
        pre = [vmwait(["W0", "X0"]), bar()]
        pre += self.stamp()
        for qb in (3, 2, 1, 0):
            pre.append(self.xread(0, 0, qb))
        pre += self.wread(0, *frs[0])
        pre += self.wread(1, *frs[1])
        for qb in range(4):
            pre.append(self.xread(0, 1, qb))
        pre += self.wread(2, *frs[2])
        for s in range(10):
            tags = [f"W{s+1}"] if s < 9 else ["W10", "W11", "W12", "W13", "K0"]
            xr = {1: 1, 3: 2, 4: 3, 5: 4, 6: 5, 7: 6}.get(s)
            if xr is not None:
                tags.append(f"X{xr}")
            sc.sc(64 * s + 53, vmwait(tags), bar())
            if xr is not None:
                gl = [54, 56, 57, 58, 60, 61, 62, 64]
                k = 0
                for tt in range(2):
                    for qb in (3, 2, 1, 0):
                        sc.at(64 * s + gl[k], self.xread(xr, tt, qb))
                        k += 1
        W = lambda s: (self.w_pre(s), self.w_dma(s), [])
        X = lambda p: ([dswait([f"xr{p-2}"])] + self.x_pre(p), self.x_dma(p), [])
        KV = lambda w, t, sl: ([], self.kv_dma(w, t, sl), self.kv_post(w))
        plan = {0: [X(2), W(3)], 2: [W(4), X(3)], 3: [W(5), KV('K', 0, 0)], 4: [W(6), X(4)], 5: [W(7), X(5)],
                6: [W(8), X(6)], 7: [W(9), W(13)], 8: [W(10), W(11), W(12)],
                9: [KV('K', 1, 9), KV('V', 0, 4), KV('V', 1, 5)], 10: [KV('K', 2, 2)]}
        for s, groups in plan.items():
            self.dma_run(sc, range(64 * s + 5, 64 * s + 53, 4), groups)
        gb = base - 99
        sc.sc(gb, vmwait(["K1"]), bar())
        self.dma_run(sc, range(gb + 4, gb + 40, 4), [KV('K', 3, 3)])
        ti = 0
        for blk in range(16):
            t, u = blk >> 1, blk & 1
            for qb in sorted(range(4), key=lambda q: done[(blk, q)]):
                e = done[(blk, qb)] + 2
                dead = base + 8 * qb + t - 1
                dst = Q(t, qb) + 2 * u
                if t < 4:
                    tm = L0 + 4 * (ti & 1)
                    ti += 1
                    a0 = 32 * t + 16 * u + 4 * qb
                    ops = [V("v_accvgpr_read_b32", v1(tm + r), f"a{a0+r}") for r in range(4)]
                    qn = 'ca'
                else:
                    tm = Q(t, qb) if u == 0 else 128 + 16 * (t - 4) + 4 * qb
                    ops = []
                    qn = f'cv{qb}'
                    if u == 1 and t == 4:
                        dead = min(dead, base + 8 * qb)
                ops += [V("v_mul_f32", v1(tm + r), S_C, v1(tm + r)) for r in range(4)]
                ops += [V("v_cvt_pk_bf16_f32", v1(dst), v1(tm), v1(tm + 1)),
                        V("v_cvt_pk_bf16_f32", v1(dst + 1), v1(tm + 2), v1(tm + 3))]
                for o in ops:
                    sc.q(qn, o, early=e, dead=dead)
        for t in range(8):
            sc.at(base - 12 + t, self.kread(t, 0, t, 0))
        self.qk_part(sc, base, 0, cinit=False)
        for qb in range(4):
            for r in range(4):
                sc.q(f'cv{qb}', V("v_mov_b32", v1(CI(qb) + r), "0"), early=base, dead=base + 64)
        misc = [V("v_add_u32", v1(WHI), hex(8 * SLOT), v1(KA)), V("v_add_u32", v1(WHI + 1), hex(8 * SLOT), v1(KA + 1))]
        for o in misc:
            sc.q('misc', o, early=base - 12, dead=base + 44)
        va = [V("v_mbcnt_lo_u32_b32", v1(VA + 3), "-1", "0"), V("v_mbcnt_hi_u32_b32", v1(VA + 3), "-1", v1(VA + 3)),
              V("v_lshrrev_b32", v1(VA), "2", v1(VA + 3)), V("v_lshlrev_b32", v1(VA), "7", v1(VA)),
              V("v_bfe_u32", v1(VA + 1), v1(VA + 3), "3", "2"), V("v_lshl_add_u32", v1(VA), v1(VA + 1), "5", v1(VA)),
              V("v_and_b32", v1(VA + 1), "3", v1(VA + 3)), V("v_lshl_add_u32", v1(VA), v1(VA + 1), "3", v1(VA)),
              V("v_add_u32", v1(VA), hex(4 * SLOT), v1(VA)),
              V("v_xor_b32", v1(VA + 1), "32", v1(VA)), V("v_xor_b32", v1(VA + 2), "64", v1(VA)),
              V("v_xor_b32", v1(VA + 3), "0x60", v1(VA))]
        for o in va:
            sc.q('misc', o, early=base - 12, dead=base + 64)
        sc.at(base + 45, self.kread(6, 0, 6, 9, WHI, 8 * SLOT))
        sc.at(base + 46, self.kread(7, 0, 7, 9, WHI, 8 * SLOT))
        for t in range(6):
            sc.at(base + 58 + t, self.kread(t, 0, t, 9, WHI, 8 * SLOT))
        for qb in range(4):
            sc.q('ca', V("v_mov_b32", v1(L0 + qb), "0"), early=base, dead=base + 9)
        for k in range(1, 8):
            sc.sc(base + 2 + k, S("s_mov_b32", S_TAB(k), hex(k * 28672)))
        rest = self.softmax(sc, base, base + 63, first=True)
        body = sc.emit()
        print("qproj exposed slots", sc.over, "rest", len(rest))
        post = rest + self.cvtP(0, 0) + [vmwait(["V0"]), bar()] + self.stamp() + self.rare_branch(first=True)
        return pre + body + post

    def pv_part(self, sc, tile, first, pbase=None, n0=0):
        base = len(sc.m)
        idx = {}
        for db in range(16):
            for j in range(4):
                qb = j if db & 1 else 3 - j
                pp = P(qb) if pbase is None else pbase + 4 * qb
                idx[(db, qb)] = sc.add(mfma(a4(O(db, qb)), v4(B(8 + (n0 + db + 2) % 3)), v4(pp),
                                            "0" if first else a4(O(db, qb))))
        return idx

    def vread(self, tile, db, n0=0):
        return self.trpair(8 + (n0 + db + 2) % 3, VA + (db & 3), (tile % 4) * SLOT + (db >> 2) * 4096, 2048)

    def iteration(self, i):
        sc = Sched(f"iter{i}")
        T = i + 1
        if i == 0:
            self.qk_part(sc, 0, 9, True, WHI, 8 * SLOT)
        else:
            self.qk_part(sc, 0, T % 4, True)
        self.pv_part(sc, i, i == 0)
        sc.at(50, *self.vread(i, 0))
        sc.at(56, *self.vread(i, 1))
        sc.at(57, *self.vread(i, 2))
        for db in range(3, 16):
            sc.at(55 + 4 * db, *self.vread(i, db))
        if i < 30:
            for t, g in enumerate((104, 105, 108, 109, 112, 113, 116, 117)):
                sc.at(g, self.kread(t, 0, t, (i + 2) % 4))
        else:
            for db in range(3):
                sc.at(119 + 4 * db, *self.vread(31, db, 16))
        KV = lambda w, t, sl: ([], self.kv_dma(w, t, sl), self.kv_post(w))
        TT = lambda c: ([], self.wo_dma(c), self.wo_post())
        tags = [f"V{i+1}"] + ([f"K{i+2}"] if i < 30 else [])
        sc.sc(73, vmwait(tags, force=12 if 1 <= i <= 28 else None), bar())
        if i == 0:
            self.dma_run(sc, range(5, 50, 4), [KV('V', 2, 6), KV('K', 4, 0)])
        if i <= 28:
            self.dma_run(sc, (77, 81, 85, 89, 93, 97, 101, 106), [KV('V', i + 3, 4 + (i + 3) % 4), KV('K', i + 5, (i + 5) % 4)])
        elif i == 29:
            self.dma_run(sc, (5, 13, 21, 33, 38, 46, 54, 62), [TT(0)])
            self.dma_run(sc, (77, 81, 85, 89, 93, 97, 101, 106), [TT(1)])
            sc.sc(120, *self.kv_post('K'))
        else:
            self.dma_run(sc, (77, 81, 85, 89, 93, 97, 101, 106), [TT(2)])
            sc.sc(120, *self.kv_post('K'))
        for qb in range(4):
            sc.q('sum', V("v_add_f32", v1(L0 + qb), v1(L0 + qb), v1(LT0 + qb)), early=0)
        for kb in range(2):
            for qb in range(4):
                if (kb, qb) != (0, 0):
                    for o in self.cvtP(kb, qb):
                        sc.q('cvt', o, early=0, dead=32 * kb + 8 * qb)
        rest = self.softmax(sc, 0, 120)
        assert not rest
        if i < 30:
            sc.at(124, *self.cvtP(0, 0))
        else:
            for kb in range(2):
                for qb in range(4):
                    for o in self.cvtP(kb, qb, B(0)):
                        sc.q('sum', o, early=64)
        body = sc.emit(flush=False)
        if sc.over:
            print(f"iter {i} over", sc.over)
        return body + self.rare_branch(last=(i == 30))

    def outproj(self):
        c = self.c
        sc = Sched("out")
        pidx = self.pv_part(sc, 31, False, pbase=B(0), n0=16)
        for db in range(3, 16):
            sc.at(4 * db - 9, *self.vread(31, db, 16))
        frs = [(0, tau, nb) for tau in range(8) for nb in range(4)]
        frs += [(cc, tau, nb) for cc in range(1, 7) for nb in range(4) for tau in range(8)]

        def acc(cc, nb, qb):
            if cc == 0:
                return 128 + 16 * nb + 4 * qb
            return (192 if nb % 2 == 0 else 144) + 4 * qb
        win = {0: 8, 1: 0, 2: 0, 3: 4, 4: 4, 5: 8, 6: 0}
        first, lastm, rdgap = {}, {}, {}
        for k, (cc, tau, nb) in enumerate(frs):
            n = 32 + k
            for j in range(4):
                qb = j if n & 1 else 3 - j
                a = v4(acc(cc, nb, qb))
                i = sc.add(mfma(a, v4(B(8 + (n + 2) % 3)), v4(16 * tau + 4 * qb), "0" if tau == 0 else a))
                if tau == 0:
                    first[(cc, nb, qb)] = i
                if tau == 7:
                    lastm[(cc, nb, qb)] = i
                if cc == 0 and nb == 0:
                    first[('o', tau, qb)] = i
            g = 64 + 4 * k - 9
            rdgap[(cc, tau, nb)] = g
            sc.at(g, *self.trpair(8 + (n + 2) % 3, VA + nb, (TSLOT[cc] - win[cc]) * SLOT + tau * 4096, 2048))
        for nb in range(4):
            sc.q('va', V("v_add_u32", v1(VA + nb), hex(4 * SLOT), v1(VA + nb)), early=4 * (12 + nb) - 9,
                 dead=rdgap[(0, 0, nb)])
        for cc in range(6):
            d = (win[cc + 1] - win[cc]) * SLOT
            if d:
                for nb in range(4):
                    op = V("v_add_u32", v1(VA + nb), hex(d), v1(VA + nb)) if d > 0 else \
                        V("v_subrev_u32", v1(VA + nb), hex(-d), v1(VA + nb))
                    sc.q('va', op, early=rdgap[(cc, 7, nb)], dead=rdgap[(cc + 1, 0, nb)])
        TT = lambda cc: ([], self.wo_dma(cc), self.wo_post())
        self.dma_run(sc, range(1, 40, 4), [TT(3)])
        for cc in range(7):
            g = 64 + 128 * cc - 11
            sc.sc(g, vmwait([f"T{cc}"]), bar())
            if 1 <= cc <= 3:
                self.dma_run(sc, range(g + 4, g + 100, 8), [TT(cc + 3)])
        ti = 0
        for db in range(16):
            for qb in sorted(range(4), key=lambda q: pidx[(db, q)]):
                tm = B(4) + 4 * (ti % 4)
                ti += 1
                dst = 16 * (db >> 1) + 4 * qb + 2 * (db & 1)
                ops = [V("v_accvgpr_read_b32", v1(tm + r), f"a{O(db,qb)+r}") for r in range(4)]
                ops += [V("v_cvt_pk_bf16_f32", v1(dst), v1(tm), v1(tm + 1)),
                        V("v_cvt_pk_bf16_f32", v1(dst + 1), v1(tm + 2), v1(tm + 3))]
                for o in ops:
                    sc.q('oc', o, early=pidx[(db, qb)] + 2, dead=first[('o', db >> 1, qb)] - 1)
        fin = [V("v_add_f32", v1(L0 + q), v1(L0 + q), v1(LT0 + q)) for q in range(4)]
        for sw in ("v_permlane32_swap_b32", "v_permlane16_swap_b32"):
            fin += [V("v_mov_b32", v1(LT0 + q), v1(L0 + q)) for q in range(4)]
            fin += [V(sw, v1(L0 + q), v1(LT0 + q)) for q in range(4)]
            fin += [V("v_add_f32", v1(L0 + q), v1(L0 + q), v1(LT0 + q)) for q in range(4)]
        fin += [V("v_rcp_f32", v1(L0 + q), v1(L0 + q)) for q in range(4)]
        for o in fin:
            sc.q('out', o, early=0)

        def conv(cc, nb, dead):
            order = sorted(range(4), key=lambda q: lastm[(cc, nb, q)])
            for qb in order:
                a = acc(cc, nb, qb)
                st = (128 + 16 * (nb & 2) + 4 * qb) if cc == 0 else 128 + 4 * qb
                dst = st + 2 * (nb & 1)
                ops = [V("v_mul_f32", v1(a + r), v1(L0 + qb), v1(a + r)) for r in range(4)]
                ops += [V("v_cvt_pk_bf16_f32", v1(dst), v1(a), v1(a + 1)),
                        V("v_cvt_pk_bf16_f32", v1(dst + 1), v1(a + 2), v1(a + 3))]
                if nb & 1:
                    ops.append(gstore(v4(st), v1(VS), SWS, S_ST(qb), (nb >> 1) * 256, f"st{cc}", c.stpol))
                    if nb == 3:
                        ops.append(S("s_add_u32", S_ST(qb), S_ST(qb), hex(32768)))
                for o in ops:
                    sc.q('out', o, early=lastm[(cc, nb, qb)] + 2, dead=dead(qb))
        INF = 10**9
        conv(0, 0, lambda qb: INF)
        conv(0, 1, lambda qb: first[(1, 1, qb)])
        conv(0, 2, lambda qb: INF)
        conv(0, 3, lambda qb: INF)
        seq = [(cc, nb) for cc in range(1, 7) for nb in range(4)]
        for k, (cc, nb) in enumerate(seq):
            if k + 2 < len(seq):
                conv(cc, nb, lambda qb, nx=seq[k + 2]: first[(nx[0], nx[1], qb)])
            else:
                conv(cc, nb, lambda qb: INF)
        body = sc.emit()
        print("outproj exposed slots", sc.over)
        return self.stamp() + body

    def rare(self):
        p = []
        A = p.append
        for k, (first, last) in enumerate(self.stubs):
            A(label(f"L_stub{k}"))
            A(S("s_mov_b32", S_RET, str(k)))
            if first:
                A(S("s_mov_b32", S_RT, "0"))
            else:
                A(S("s_sub_u32", S_RT, S_KO, hex(5 * SLOT)))
            A(br("s_branch", "L_rare"))
        A(label("L_rare"))
        A(nop(15))
        A(waitall('vm', 'lg'))
        T, F, U = 160, 164, 168
        A(V("v_mbcnt_lo_u32_b32", v1(U), "-1", "0"))
        A(V("v_mbcnt_hi_u32_b32", v1(U), "-1", v1(U)))
        A(V("v_and_b32", v1(TMP), "15", v1(U)))
        A(V("v_lshlrev_b32", v1(TMP), "9", v1(TMP)))
        A(V("v_lshrrev_b32", v1(U), "4", v1(U)))
        A(V("v_lshl_add_u32", v1(TMP), v1(U), "4", v1(TMP)))
        A(S("s_add_u32", S_T1, S_RT, "0x2000"))
        lds = [gload(v4(B(8 + n % 3)), v1(TMP), SK, S_RT if n < 8 else S_T1, (n & 7) * 64, f"r{n}") for n in range(16)]
        A(lds[0])
        A(lds[1])
        for n in range(16):
            if n + 2 < 16:
                A(lds[n + 2])
            kb, t = n >> 3, n & 7
            for qb in range(4):
                A(mfma(v4(Sx(kb, qb)), v4(B(8 + n % 3)), v4(Q(t, qb)), "0" if t == 0 else v4(Sx(kb, qb))))
        for qb in range(4):
            s0, s1 = Sx(0, qb), Sx(1, qb)
            A(V("v_max3_f32", v1(T + qb), v1(s0), v1(s0 + 1), v1(s0 + 2)))
            A(V("v_max3_f32", v1(T + qb), v1(T + qb), v1(s0 + 3), v1(s1)))
            A(V("v_max3_f32", v1(T + qb), v1(T + qb), v1(s1 + 1), v1(s1 + 2)))
            A(V("v_max_f32", v1(T + qb), v1(T + qb), v1(s1 + 3)))
        for sw in ("v_permlane32_swap_b32", "v_permlane16_swap_b32"):
            for qb in range(4):
                A(V("v_mov_b32", v1(U + qb), v1(T + qb)))
            for qb in range(4):
                A(V(sw, v1(T + qb), v1(U + qb)))
            for qb in range(4):
                A(V("v_max_f32", v1(T + qb), v1(T + qb), v1(U + qb)))
        for qb in range(4):
            A(V("v_ceil_f32", v1(T + qb), v1(T + qb)))
        A(S("s_cmp_eq_u32", S_RET, "0"))
        A(br("s_cbranch_scc1", "L_rare_noscale"))
        for qb in range(4):
            A(V("v_max_f32", v1(T + qb), v1(T + qb), "-" + v1(CI(qb))))
        for qb in range(4):
            A(V("v_sub_f32", v1(F + qb), "-" + v1(CI(qb)), v1(T + qb)))
        for qb in range(4):
            A(V("v_exp_f32", v1(F + qb), v1(F + qb)))
        for qb in range(4):
            A(V("v_mul_f32", v1(L0 + qb), v1(L0 + qb), v1(F + qb)))
        for db in range(16):
            for qb in range(4):
                for r in range(4):
                    A(V("v_accvgpr_read_b32", v1(U + r), f"a{O(db,qb)+r}"))
                for r in range(4):
                    A(V("v_mul_f32", v1(U + r), v1(U + r), v1(F + qb)))
                for r in range(4):
                    A(V("v_accvgpr_write_b32", f"a{O(db,qb)+r}", v1(U + r)))
        A(label("L_rare_noscale"))
        for qb in range(4):
            for r in range(4):
                A(V("v_sub_f32", v1(CI(qb) + r), "0", v1(T + qb)))
        for kb in range(2):
            for qb in range(4):
                for r in range(4):
                    A(V("v_add_f32", v1(Sx(kb, qb) + r), v1(Sx(kb, qb) + r), v1(CI(qb))))
                for r in range(4):
                    A(V("v_exp_f32", v1(Sx(kb, qb) + r), v1(Sx(kb, qb) + r)))
        for qb in range(4):
            s0, s1, lt = Sx(0, qb), Sx(1, qb), v1(LT0 + qb)
            A(V("v_add_f32", lt, v1(s0), v1(s0 + 1)))
            for x in (s0 + 2, s0 + 3, s1, s1 + 1, s1 + 2, s1 + 3):
                A(V("v_add_f32", lt, lt, v1(x)))
        p += self.cvtP(0, 0)
        for k, (first, last) in enumerate(self.stubs):
            if last:
                continue
            A(S("s_cmp_eq_u32", S_RET, str(k)))
            A(br("s_cbranch_scc1", f"L_ret{k}"))
        k = [j for j, s in enumerate(self.stubs) if s[1]][0]
        for kb in range(2):
            for qb in range(4):
                p += self.cvtP(kb, qb, B(0))
        A(nop(3))
        A(br("s_branch", f"L_ret{k}"))
        return p

    def stamps_out(self):
        if not self.c.stamps:
            return []
        p = [waitall('vm')] + self.stamp()
        p += [V("v_mov_b32", "v1", "0")]
        for k in range(self.nstamp):
            p.append(V("v_writelane_b32", "v1", f"s{80+k}", str(k)))
        p += [S("s_add_u32", "s28", "s70", hex(0x8000000)), S("s_addc_u32", "s29", "s71", "0"),
              S("s_mov_b32", "s30", hex(0x100000)),
              S("s_lshl_b32", "s54", "s2", "2"), S("s_add_u32", "s54", "s54", S_WAVE), S("s_lshl_b32", "s54", "s54", "8"),
              V("v_mbcnt_lo_u32_b32", "v2", "-1", "0"), V("v_mbcnt_hi_u32_b32", "v2", "-1", "v2"),
              V("v_lshlrev_b32", "v2", "2", "v2"),
              gstore("v1", "v2", SWS, "s54", 0, "dbg", op="buffer_store_dword")]
        return p

    def main_kernel(self):
        marks = {}
        prog = self.prologue() + self.qproj()
        for i in range(31):
            prog.append(label(f"@it{i}"))
            its = self.iteration(i)
            prog += its
        prog.append(label("@it31"))
        prog += self.outproj() + self.stamps_out() + [waitall('vm')]
        prog = insert_waits(prog, verbose=True)
        prog, nfix = check_hazards(prog)
        print("hazard fixes in main:", nfix)
        pos = {i.t[1:-1]: k for k, i in enumerate(prog) if i.k == 'L' and i.t.startswith('@')}
        def seg(i):
            return prog[pos[f"it{i}"] + 1:pos[f"it{i+1}"]]
        def norm(s):
            return [x.t for x in s if x.k not in ('L', 'J')]
        for i in range(1, 25):
            assert norm(seg(i)) == norm(seg(i + 4)), f"iteration {i} and {i+4} differ"
        out = prog[:pos["it0"]] + seg(0)
        out.append(S("s_mov_b32", S_LOOP, "7"))
        out.append(raw(".p2align 6", 'L'))
        out.append(label("L_loop"))
        for i in range(1, 5):
            out += seg(i)
        out += [S("s_sub_u32", S_LOOP, S_LOOP, "1"), S("s_cmp_lg_u32", S_LOOP, "0"), br("s_cbranch_scc1", "L_loop")]
        out += seg(29) + seg(30) + prog[pos["it31"] + 1:]
        used = sorted(int(x.t.split("L_stub")[1]) for x in out if x.k == 'J' and "L_stub" in x.t)
        remap = {k: j for j, k in enumerate(used)}
        for x in out:
            if x.k == 'J' and "L_stub" in x.t:
                x.t = f"s_cbranch_vccnz L_stub{remap[int(x.t.split('L_stub')[1])]}"
            if x.k == 'L' and x.t.startswith("L_ret"):
                x.t = f"L_ret{remap[int(x.t[5:-1])]}:"
        self.stubs = [self.stubs[k] for k in used]
        out.append(label("L_end"))
        out.append(raw("s_endpgm"))
        r = insert_waits(self.rare())
        r, _ = check_hazards(r, verbose=False)
        return out + r + [label("L_code_end")]

    def reduce_kernel(self):
        c = self.c
        p = []
        A = p.append
        A(S("s_cmp_ge_u32", "s2", "0x100"))
        A(br("s_cbranch_scc1", "L_rend"))
        A(raw("s_load_dwordx2 s[4:5], s[0:1], 56"))
        A(raw("s_load_dwordx2 s[6:7], s[0:1], 40"))
        A(V("v_lshrrev_b32", "v1", "6", "v0"))
        A(V("v_and_b32", "v0", "63", "v0"))
        A(V("v_readfirstlane_b32", "s3", "v1"))
        A(V("v_lshrrev_b32", "v2", "5", "v0"))
        A(V("v_lshlrev_b32", "v2", "11", "v2"))
        A(V("v_and_b32", "v3", "31", "v0"))
        A(V("v_lshl_add_u32", "v2", "v3", "4", "v2"))
        A(S("s_lshl_b32", "s16", "s3", "9"))
        A(V("v_add_u32", "v2", "s16", "v2"))
        A(S("s_mul_i32", "s17", "s2", hex(229376)))
        A(raw("s_waitcnt lgkmcnt(0)"))
        A(S("s_add_u32", "s8", "s4", "s17"))
        A(S("s_addc_u32", "s9", "s5", "0"))
        A(S("s_mov_b32", "s10", hex(229376)))
        A(S("s_mov_b32", "s11", "0x20000"))
        for n in range(56):
            A(S("s_mov_b32", "s18", hex(n * 4096)))
            A(gload(v4(16 + 4 * n), "v2", "s[8:11]", "s18", 0, f"p{n}", c.rdpol))
        A(S("s_mul_i32", "s17", "s2", hex(16 * 896)))
        A(S("s_mul_i32", "s16", "s3", hex(4 * 896)))
        A(S("s_add_u32", "s17", "s17", "s16"))
        A(S("s_add_u32", "s12", "s6", "s17"))
        A(S("s_addc_u32", "s13", "s7", "0"))
        A(S("s_mov_b32", "s14", hex(4 * 896)))
        A(S("s_mov_b32", "s15", "0x20000"))
        A(V("v_bfe_u32", "v3", "v0", "2", "2"))
        A(V("v_mul_u32_u24", "v3", "0x380", "v3"))
        A(V("v_lshrrev_b32", "v4", "4", "v0"))
        A(V("v_lshl_add_u32", "v3", "v4", "5", "v3"))
        A(V("v_and_b32", "v5", "3", "v0"))
        A(V("v_lshl_add_u32", "v3", "v5", "3", "v3"))
        A(V("v_and_b32", "v5", "15", "v0"))
        A(V("v_and_b32", "v4", "1", "v4"))
        A(V("v_lshlrev_b32", "v4", "3", "v4"))
        A(V("v_sub_u32", "v5", "v5", "v4"))
        A(V("v_and_b32", "v6", "1", "v5"))
        A(V("v_lshlrev_b32", "v6", "4", "v6"))
        A(V("v_mov_b32", "v7", "0x3f80"))
        A(V("v_lshlrev_b32", "v6", "v6", "v7"))
        A(V("v_ashrrev_i32", "v5", "1", "v5"))
        for r in range(4):
            A(V("v_cmp_eq_u32", "vcc", str(r), "v5"))
            A(nop(1))
            A(Ins(f"v_cndmask_b32 v{8+r}, 0, v6, vcc", 'V', ["v6", "vcc"], [f"v{8+r}"]))
        for cc in range(7):
            d = 240 + 4 * (cc & 1)
            for m in range(8):
                A(mfma(v4(d), v4(8), v4(16 + 4 * (cc * 8 + m)), "0" if m == 0 else v4(d)))
            e = 248 + 2 * (cc & 1)
            A(V("v_cvt_pk_bf16_f32", v1(e), v1(d), v1(d + 1)))
            A(V("v_cvt_pk_bf16_f32", v1(e + 1), v1(d + 2), v1(d + 3)))
            A(gstore(v2(e), "v3", "s[12:15]", "0", cc * 128, f"o{cc}", op="buffer_store_dwordx2"))
        A(waitall('vm'))
        p = insert_waits(p)
        p, _ = check_hazards(p, verbose=False)
        return p + [label("L_rend"), raw("s_endpgm")]


HEADER = open("cdna_kernels/" + NAME + ".s.ref").read().split("; Override launch")[0]


def kd(name, vgpr, accum):
    return f""".p2align 6
.amdhsa_kernel {name}
  .amdhsa_next_free_vgpr {vgpr}
  .amdhsa_next_free_sgpr 102
  .amdhsa_accum_offset {accum}
  .amdhsa_group_segment_fixed_size 0
  .amdhsa_kernarg_size 64
  .amdhsa_user_sgpr_count 2
  .amdhsa_user_sgpr_kernarg_segment_ptr 1
  .amdhsa_system_sgpr_workgroup_id_x 1
.end_amdhsa_kernel
"""


def generate(cfg):
    g = Gen(cfg)
    main = text(g.main_kernel())
    red = text(g.reduce_kernel())
    k1, k2 = NAME + "_kernel", "mha_reduce_kernel"
    main = main.replace("CODE_SPAN", f"L_code_end-{k1}-256")
    o = HEADER
    o += f"; @launch kernel={k1} grid=(256,1,1) block=(256,1,1) lds=163840\n"
    o += f"; @launch kernel={k2} grid=(256,1,1) block=(256,1,1) lds=0\n"
    o += '.amdgcn_target "amdgcn-amd-amdhsa--gfx950"\n.text\n'
    for n, body in ((k1, main), (k2, red)):
        o += f".globl {n}\n.p2align 8\n.type {n},@function\n{n}:\n{body}"
    o += '.section .rodata,"a"\n' + kd(k1, 512, 256) + kd(k2, 256, 256)
    return o


if __name__ == "__main__":
    cfg = Cfg()
    out = "cdna_kernels/" + NAME + ".s"
    for a in sys.argv[1:]:
        k, v = a.split("=", 1)
        if k == "out":
            out = v
        else:
            old = getattr(cfg, k)
            setattr(cfg, k, (v == "1") if isinstance(old, bool) else type(old)(v))
    open(out, "w").write(generate(cfg))
    print("wrote", out)
```

```python
import sys, os, struct
sys.path.insert(0, os.path.dirname(os.path.abspath(__file__)))
from asmlib import *

NAME = "standalone__mha_block_cached__near_ridge"
SLOT = 16384


def fbits(x):
    return "0x%08x" % struct.unpack("<I", struct.pack("<f", x))[0]


class Cfg:
    rot = "2g"
    kvpol = "nt"
    wpol = ""
    stpol = ""
    rdpol = ""
    stamps = 0
    thr_hi = 2.0 ** 20
    thr_lo = 2.0 ** -40
    codetouch = True
    abl = ""
    trot = 0
    kvmap = "9,10,11,12,13"
    bg = 48
    hb = 0
    pad = 0
    xred = 0
    wsoff = 0
    fuse = 1
    goff = 40
    nin = 0
    isp = 128
    cd = 120
    slp = 2
    tdel = 0
    tstp = 8
    wot = 0
    wotg = 110
    wotpol = ""
    wopol = ""
    woq = 0
    xmap = "4x8"
    g1 = 56
    g11 = 72
    g2 = 92
    g3 = 114
    p1 = 18
    p2 = 40
    p3 = 62
    q2 = 26
    q3 = 46
    sh4 = 20
    lo = 1
    so = 8
    sspl = 6
    rpos = 22
    ssp = 14
    ack = 20
    tsp = 2
    tp = 6
    tt0 = 0
    pfpol = ""
    tpos = "3:1,4:109,5:u2,6:u4"
    tsp0 = 3
    pfi = 0
    pfq = 0
    pfd = 30
    pf0 = 0
    pf1 = 0
    ttg = 0
    wom = 0
    fm = 0
    touch = 0
    tstep = 5


def Q(t, qb): return 16 * t + 4 * qb
def Sx(kb, qb): return 128 + 16 * kb + 4 * qb
def P(qb): return 160 + 4 * qb
def CI(qb): return 176 + 4 * qb
def B(n): return 192 + 4 * n
L0, LT0, TMP = 236, 240, 244
KA, VA, VKV, VX, VS = 245, 247, 251, 252, 253
XA, WLO, WHI, VW_ = 247, 249, 254, 244
def O(db, qb): return 16 * db + 4 * qb
def v4(n): return R('v', n, 4)
def v2(n): return R('v', n, 2)
def a4(n): return R('a', n, 4)
def v1(n): return f"v{n}"

SX, SW, SK, SV, SWO, SWS = "s[8:11]", "s[12:15]", "s[16:19]", "s[20:23]", "s[24:27]", "s[28:31]"
S_WAVE, S_B, S_H, S_C, S_HI = "s3", "s4", "s5", "s6", "s7"
S_W1K, S_XB, S_KO, S_VO, S_LOOP, S_RET, S_T0, S_T1 = "s32", "s33", "s34", "s35", "s36", "s37", "s38", "s39"
S_LO, S_RT = "s47", "s52"
def S_TAB(k): return "0" if k == 0 else f"s{39+k}"
def S_SIG(p): return f"s{72+p}"
def S_ST(qb): return f"s{48+qb}"
S_XBASE = ("s58", "s59")
S_R0, STC, S_TO, S_CT = "s53", "s[84:87]", "s88", "s90"
SDBG, SOUT, SFL, SPL, S_PC, S_SPIN = "s[84:87]", "s[80:83]", "s[8:11]", "s[12:15]", "s79", "s91"
S_H4 = "s88"
TOK = 254
RI, RD, RC, VPO, VFO, VPA, VPB, VOO, POLL, FLG, PT = 160, 164, 172, 186, 187, 188, 189, 190, 191, 240, 241
S_TOK, S_THR, S_LD, S_RD, S_DN = "s72", "s73", "s74", "s75", "s76"
qVPO, qVFO, qVPA, qVPB, qVOO, qPOLL, qFLG, qPT, qVPF = 240, 241, 242, 243, 245, 246, 251, 254, 255
qRI, qRD, qRC = 176, 180, 184
NREC = hex(204800)
FLAGS_OFF = 16 * 3670016

WSLOT = [2, 3, 8, 9, 2, 3, 8, 9, 2, 3, 8, 6, 7, 1]
TSLOT = [8, 0, 2, 4, 6, 8, 0]


class Gen:
    def __init__(self, cfg):
        self.c = cfg
        self.stubs = []
        self.nstamp = 0
        self.spins = []
        self.loaded = 0
        self.lnames = []
        self.quiet = False

    def stamp(self, reg=TMP, key=False):
        if not self.c.stamps or (self.c.stamps == 3 and not key) or (self.c.stamps == 5 and self.quiet):
            return []
        return [raw("s_memrealtime s[98:99]"), raw("s_memtime s[100:101]"), raw("s_waitcnt lgkmcnt(0)"),
                raw(f"v_mov_b32 v{reg}, s98"), raw(f"buffer_store_dword v{reg}, off, s[92:95], s96"),
                raw(f"v_mov_b32 v{reg}, s100"), raw(f"buffer_store_dword v{reg}, off, s[92:95], s96 offset:4"),
                raw("s_add_u32 s96, s96, 8")]

    def lst(self, sc, g, name):
        if self.c.stamps != 5:
            return
        k = len(self.lnames)
        self.lnames.append((g, name))
        r = 60 + 2 * (k % 5)
        sc.sc(g, raw(f"s_memtime s[{r}:{r+1}]"))
        sc.sc(g + 6, raw(f"v_writelane_b32 v244, s{r}, {k}"))

    def place_dma(self, sc, g, m0imm, ins, base=S_W1K):
        sc.sc(g - 1, S("s_add_u32", "m0", base, hex(m0imm)))
        sc.at(g, ins)

    def w_dma(self, s):
        sl = WSLOT[s]
        return [(sl * SLOT + cp * 4096 - cp * 128, dma(v1(VW_), SW, S_T0, cp * 128, f"W{s}", self.c.wpol), S_W1K)
                for cp in range(4)]

    def w_pre(self, s):
        o = [S("s_lshl_b32", S_T0, S_SIG(s >> 1), "12")]
        if s & 1:
            o.append(S("s_add_u32", S_T0, S_T0, hex(32 * 8192)))
        return o

    def x_dma(self, p):
        return [((p & 1) * 32768 + oc * 1024, dma(v1(VX), SX, S_TAB(oc), 0, f"X{p}", self.c.wpol), S_XB)
                for oc in range(8)]

    def x_pre(self, p):
        return [S("s_add_u32", "s8", S_XBASE[0], S_SIG(p)), S("s_addc_u32", "s9", S_XBASE[1], "0")]

    def kv_dma(self, which, tile, slot):
        srd, so = (SK, S_KO) if which == 'K' else (SV, S_VO)
        fake = lambda cp: which == 'V' and cp < self.c.hb
        return [(slot * SLOT + cp * 4096 - cp * 128,
                 dma(v1(VKV), srd, "0" if fake(cp) else so, cp * 128, f"{which}{tile}", "" if fake(cp) else self.c.kvpol), S_W1K)
                for cp in range(4)]

    def kvm(self):
        m = [int(x) for x in self.c.kvmap.split(",")]
        assert len(set(m)) == 5 and all(9 <= x <= 18 for x in m)
        mask = sum(1 << x for x in m) | 511
        return m, mask

    def adv(self, so, sticky, tmp):
        m, mask = self.kvm()
        if mask != 0x3fff:
            assert not self.c.trot
            return [S("s_or_b32", so, so, hex(mask)), S("s_add_u32", so, so, "1"), S("s_andn2_b32", so, so, hex(mask))]
        o = [S("s_add_u32", so, so, hex(SLOT))]
        if self.c.trot:
            o.append(S("s_and_b32", so, so, "0x17ffff"))
            if sticky:
                o += [S("s_cmp_eq_u32", so, S_R0), S("s_cselect_b32", tmp, "0x100000", "0"), S("s_or_b32", so, so, tmp)]
        return o

    def kv_post(self, which):
        return self.adv(S_KO, True, S_T1) if which == 'K' else self.adv(S_VO, False, None)

    def put_touch(self, sc, g, dst, adr, tag):
        sc.at(g, gload(v1(dst), v1(adr), STC, S_TO, 0, tag, "nt", op="buffer_load_dword"))
        for k, o in enumerate(self.adv(S_TO, True, "s89")):
            sc.sc(g + 1 + k, o)

    def wo_dma(self, c):
        return [(TSLOT[c] * SLOT + k * 4096, dma(v1(VX), SWO, S_TAB(k), 0, f"T{c}", self.c.wopol), S_W1K)
                for k in range(8)]

    def wo_post(self):
        return [(S("s_add_u32", "s24", "s24", "128"), S("s_addc_u32", "s25", "s25", "0")),
                S("s_sub_u32", "s26", "s26", "128")]

    def dma_run(self, sc, gaps, groups):
        gaps = list(gaps)
        gi = 0
        for pre, lst, post in groups:
            g0 = gaps[gi]
            for k, p in enumerate(pre):
                sc.sc(g0 - 1 - len(pre) + k, p)
            for (m0, ins, base) in lst:
                g = gaps[gi]
                gi += 1
                self.place_dma(sc, g, m0, ins, base)
            for k, p in enumerate(post):
                sc.sc(g + 1 + k, *(p if isinstance(p, tuple) else (p,)))
        return gi

    def kread(self, buf, kb, t, slot, ka=KA, base=0):
        return dsr("ds_read_b128", v4(B(buf)), v1(ka + (t & 1)), slot * SLOT - base + (t >> 1) * 4096 + kb * 2048)

    def trpair(self, buf, areg, off, step):
        return [dsr("ds_read_b64_tr_b16", v2(B(buf)), v1(areg), off),
                dsr("ds_read_b64_tr_b16", v2(B(buf) + 2), v1(areg), off + step)]

    def prologue(self):
        c = self.c
        p = []
        A = p.append
        A(S("s_cmp_ge_u32", "s2", "0x100"))
        A(br("s_cbranch_scc1", "L_end"))
        if c.stamps:
            A(raw("s_memrealtime s[98:99]"))
            A(raw("s_memtime s[100:101]"))
        A(raw("s_load_dwordx4 s[60:63], s[0:1], 0", w=regs("s[60:63]")))
        A(raw("s_load_dwordx4 s[64:67], s[0:1], 16", w=regs("s[64:67]")))
        A(raw("s_load_dwordx2 s[68:69], s[0:1], 32", w=regs("s[68:69]")))
        A(raw("s_load_dwordx2 s[70:71], s[0:1], 56", w=regs("s[70:71]")))
        if c.fuse:
            A(raw("s_load_dwordx2 s[80:81], s[0:1], 40", w=regs("s[80:81]")))
            A(raw("s_load_dwordx2 s[84:85], s[0:1], 48", w=regs("s[84:85]")))
            A(raw("s_memrealtime s[88:89]", w=regs("s[88:89]")))
        A(V("v_lshrrev_b32", "v1", "6", "v0"))
        A(V("v_and_b32", "v0", "63", "v0"))
        A(V("v_readfirstlane_b32", S_WAVE, "v1"))
        A(S("s_and_b32", "s54", "s2", "7"))
        A(S("s_lshr_b32", "s55", "s2", "3"))
        if c.xmap == "4x8":
            A(S("s_and_b32", "s56", "s54", "3"))
            A(S("s_lshl_b32", "s56", "s56", "2"))
            A(S("s_and_b32", "s57", "s55", "3"))
            A(S("s_add_u32", S_B, "s56", "s57"))
            A(S("s_lshr_b32", "s56", "s54", "2"))
            A(S("s_lshl_b32", "s56", "s56", "3"))
            A(S("s_lshr_b32", "s57", "s55", "2"))
            A(S("s_add_u32", S_H, "s56", "s57"))
        else:
            A(S("s_lshl_b32", "s56", "s54", "1"))
            A(S("s_and_b32", "s57", "s55", "1"))
            A(S("s_add_u32", S_B, "s56", "s57"))
            A(S("s_lshr_b32", S_H, "s55", "1"))
        if c.codetouch:
            A(S("s_cmp_lg_u32", S_WAVE, "0"))
            A(br("s_cbranch_scc1", "L_notouch"))
            A(raw("s_getpc_b64 s[56:57]", w=["s56", "s57"]))
            A(S("s_and_b32", "s54", "s55", "7"))
            A(S("s_lshl_b32", "s54", "s54", "13"))
            A(V("v_lshlrev_b32", "v1", "7", "v0"))
            A(V("v_add_u32", "v1", "s54", "v1"))
            A(V("v_min_u32", "v1", "s53", "v1"))
            p[-1] = None
            p.pop()
            A(raw("v_min_u32 v1, CODE_SPAN, v1", 'V', r=["v1"], w=["v1"]))
            A(Ins("global_load_dword v192, v1, s[56:57]", 'G', ["v1", "s56", "s57"], ["v192"], tag="code"))
            A(label("L_notouch"))
        if c.rot == "none":
            A(S("s_mov_b32", "s72", "0"))
        elif c.rot == "h7":
            A(S("s_mul_i32", "s54", S_H, "37"))
            A(S("s_lshr_b32", "s54", "s54", "8"))
            A(S("s_mul_i32", "s54", "s54", "7"))
            A(S("s_sub_u32", "s54", S_H, "s54"))
            A(S("s_lshl_b32", "s72", "s54", "7"))
        elif c.rot in ("2g", "h", "b"):
            if c.rot == "2g":
                A(S("s_xor_b32", "s54", S_B, S_H))
            else:
                A(S("s_mov_b32", "s54", S_H if c.rot == "h" else S_B))
            A(S("s_and_b32", "s54", "s54", "1"))
            A(S("s_mul_i32", "s72", "s54", hex(4 * 128)))
        else:
            A(S("s_and_b32", "s54", S_H, "7"))
            A(S("s_and_b32", "s55", S_B, "3"))
            A(S("s_lshl_b32", "s55", "s55", "1"))
            A(S("s_add_u32", "s54", "s54", "s55"))
            A(S("s_cmp_ge_u32", "s54", "7"))
            A(S("s_cselect_b32", "s55", "7", "0"))
            A(S("s_sub_u32", "s54", "s54", "s55"))
            A(S("s_lshl_b32", "s72", "s54", "7"))
        A(V("v_lshrrev_b32", "v2", "3", "v0"))
        A(V("v_and_b32", "v3", "7", "v0"))
        A(V("v_and_b32", "v4", "6", "v2"))
        A(V("v_xor_b32", "v4", "v3", "v4"))
        A(V("v_lshlrev_b32", "v4", "4", "v4"))
        A(V("v_mul_u32_u24", v1(VX), "0x380", "v2"))
        A(V("v_add_u32", v1(VX), v1(VX), "v4"))
        A(V("v_lshrrev_b32", "v5", "2", "v0"))
        A(V("v_and_b32", "v5", "4", "v5"))
        A(V("v_xor_b32", "v5", "v3", "v5"))
        A(V("v_lshlrev_b32", "v5", "4", "v5"))
        A(V("v_lshl_add_u32", v1(VW_), "v2", "13", "v5"))
        A(S("s_lshl_b32", "s54", S_WAVE, "16"))
        A(V("v_add_u32", v1(VW_), "s54", v1(VW_)))
        A(S("s_lshl_b32", S_W1K, S_WAVE, "10"))
        A(S("s_lshl_b32", "s54", S_WAVE, "13"))
        A(S("s_add_u32", S_XB, "s54", "0x10000"))
        for k in range(1, 8):
            A(S("s_mov_b32", S_TAB(k), hex(k * 7168)))
        A(raw("s_waitcnt lgkmcnt(0)"))
        if c.stamps:
            A(S("s_add_u32", "s92", "s70", hex(0x8000000)))
            A(S("s_addc_u32", "s93", "s71", "0"))
            A(S("s_mov_b32", "s94", hex(0x100000)))
            A(S("s_mov_b32", "s95", "0x20000"))
            A(S("s_lshl_b32", "s96", "s2", "2"))
            A(S("s_add_u32", "s96", "s96", S_WAVE))
            A(S("s_lshl_b32", "s96", "s96", "9"))
            if c.stamps == 3:
                A(raw("s_load_dwordx2 s[92:93], s[0:1], 48"))
                A(S("s_cmp_eq_u32", "s96", "0"))
                A(S("s_cselect_b32", "s96", "0", "0x1000"))
                A(S("s_mov_b32", "s94", "64"))
                A(raw("s_waitcnt lgkmcnt(0)"))
                A(raw("v_not_b32 v200, s98"))
                A(raw("buffer_atomic_umax v200, off, s[92:95], 0 offset:56"))
            p += self.stamp(200, True)[3:]
        A(S("s_lshl_b32", "s54", S_H, "9"))
        A(S("s_add_u32", "s12", "s66", "s54"))
        A(S("s_addc_u32", "s13", "s67", "0"))
        A(S("s_sub_u32", "s14", hex(448 * 8192), "s54"))
        A(S("s_mov_b32", "s15", "0x20000"))
        p += self.w_pre(0)
        for (m0, ins, base) in self.w_dma(0):
            A(S("s_add_u32", "m0", base, hex(m0)))
            A(nop(0))
            A(ins)
        A(S("s_mul_i32", "s54", S_B, hex(229376)))
        A(S("s_mul_i32", "s55", S_WAVE, hex(57344)))
        A(S("s_add_u32", "s54", "s54", "s55"))
        A(S("s_add_u32", S_XBASE[0], "s60", "s54"))
        A(S("s_addc_u32", S_XBASE[1], "s61", "0"))
        A(S("s_mov_b32", "s10", hex(57344 - 768)))
        A(S("s_mov_b32", "s11", "0x20000"))
        p += self.x_pre(0)
        for (m0, ins, base) in self.x_dma(0):
            A(S("s_add_u32", "m0", base, hex(m0)))
            A(nop(0))
            A(ins)
        for k in range(1, 7):
            A(S("s_add_u32", S_SIG(k), S_SIG(k - 1), "128"))
            A(S("s_cmp_ge_u32", S_SIG(k), hex(7 * 128)))
            A(S("s_cselect_b32", S_SIG(k), "0", S_SIG(k)))
        for what in (("W", 1), ("X", 1), ("W", 2)):
            pre, lst = (self.w_pre(what[1]), self.w_dma(what[1])) if what[0] == "W" else (self.x_pre(what[1]), self.x_dma(what[1]))
            p += pre
            for (m0, ins, base) in lst:
                A(S("s_add_u32", "m0", base, hex(m0)))
                A(nop(0))
                A(ins)
        A(S("s_lshl_b32", "s54", S_B, "4"))
        A(S("s_add_u32", "s54", "s54", S_H))
        A(S("s_lshl_b32", "s55", "s54", "19"))
        A(S("s_add_u32", "s16", "s62", "s55"))
        A(S("s_addc_u32", "s17", "s63", "0"))
        A(S("s_mov_b32", "s18", hex(524288)))
        A(S("s_mov_b32", "s19", "0x20000"))
        A(S("s_add_u32", "s20", "s64", "s55"))
        A(S("s_addc_u32", "s21", "s65", "0"))
        A(S("s_mov_b32", "s22", hex(524288)))
        A(S("s_mov_b32", "s23", "0x20000"))
        A(S("s_mul_i32", "s54", S_H, hex(256 * 896)))
        A(S("s_mul_i32", "s55", S_WAVE, hex(8 * 896)))
        A(S("s_add_u32", "s54", "s54", "s55"))
        A(S("s_add_u32", "s24", "s68", "s54"))
        A(S("s_addc_u32", "s25", "s69", "0"))
        A(S("s_sub_u32", "s26", hex(4096 * 896), "s54"))
        A(S("s_mov_b32", "s27", "0x20000"))
        if c.wom == 1:
            A(S("s_lshr_b32", "s97", S_B, "1"))
            A(S("s_mul_i32", "s97", "s97", hex(28672)))
            A(S("s_and_b32", "s54", S_B, "1"))
            A(S("s_mul_i32", "s54", "s54", hex(3584)))
            A(S("s_add_u32", "s97", "s97", "s54"))
            A(V("v_min_u32", "v193", "27", "v0"))
            A(V("v_lshlrev_b32", "v193", "7", "v193"))
            A(gload("v194", "v193", SWO, "s97", 0, "wq0", c.wotpol, op="buffer_load_dword"))
        JS = 65536 if c.fuse == 2 else 229376
        A(S("s_mul_i32", "s54", S_B, hex(16 * JS)))
        A(S("s_mul_i32", "s55", S_WAVE, hex(4 * JS)))
        A(S("s_add_u32", "s54", "s54", "s55"))
        A(S("s_lshl_b32", "s55", S_H, "8" if c.fuse == 2 else "9"))
        A(S("s_add_u32", "s54", "s54", "s55"))
        if c.wsoff:
            A(S("s_add_u32", "s54", "s54", hex(c.wsoff << 20)))
        A(S("s_add_u32", "s28", "s70", "s54"))
        A(S("s_addc_u32", "s29", "s71", "0"))
        A(S("s_mov_b32", "s30", hex(4 * JS - 4096 + 256 if c.fuse == 2 else 4 * JS - 8192 + 512)))
        A(S("s_mov_b32", "s31", "0x20000"))
        if c.fuse:
            A(S("s_lshl_b32", "s54", S_B, "4"))
            A(S("s_add_u32", "s84", "s84", "s54"))
            A(S("s_addc_u32", "s85", "s85", "0"))
            A(S("s_mov_b32", "s86", "12" if c.fuse == 2 else "4"))
            A(S("s_mov_b32", "s87", "0x20000"))
            A(S("s_or_b32", "s88", "s88", "1"))
            A(S("s_add_u32", "s54", S_H, S_WAVE))
            A(V("v_add_u32", "v5", "s54", "v0"))
            A(V("v_lshlrev_b32", "v5", "12", "v5"))
            A(V("v_mov_b32", "v6", "s88"))
            A(gstore("v6", "v5", SDBG, "0", 0, "tok", "sc1", op="buffer_store_dword"))
            if c.fuse == 2:
                A(raw("s_getreg_b32 s55, hwreg(HW_REG_XCC_ID, 0, 4)", w=["s55"]))
                A(S("s_add_u32", "s55", "s55", "1"))
                A(S("s_mul_i32", S_PC, "s55", "0x11111111"))
                A(S("s_and_b32", "s54", S_H, "7"))
                A(S("s_lshl_b32", "s54", "s54", "2"))
                A(S("s_lshl_b32", "s55", "s55", "s54"))
                A(S("s_lshr_b32", "s54", S_H, "3"))
                A(S("s_lshl_b32", "s54", "s54", "2"))
                A(S("s_add_u32", "s54", "s54", "4"))
                A(V("v_add_u32", "v7", S_WAVE, "v0"))
                A(V("v_lshl_add_u32", "v7", "v7", "12", "s54"))
                A(V("v_mov_b32", "v8", "s55"))
                A(gstore("v8", "v7", SDBG, "0", 0, "xcc", "sc1", op="buffer_atomic_or"))
            A(S("s_lshl_b32", S_H4, S_H, "2"))
            A(S("s_lshl_b32", "s54", S_B, "4"))
            A(S("s_add_u32", "s54", "s54", S_H))
            A(S("s_lshl_b32", "s54", "s54", "2"))
            A(S("s_add_u32", "s54", "s54", S_WAVE))
            A(S("s_mul_i32", "s54", "s54", hex(4 * 896)))
            A(S("s_add_u32", "s80", "s80", "s54"))
            A(S("s_addc_u32", "s81", "s81", "0"))
            A(S("s_mov_b32", "s82", hex(4 * 896)))
            A(S("s_mov_b32", "s83", "0x20000"))
        for qb in range(4):
            A(S("s_mov_b32", S_ST(qb), hex(qb * JS)))
        if c.trot:
            A(S("s_mul_i32", S_R0, "s2", str(c.trot)))
            A(S("s_and_b32", S_R0, S_R0, "31"))
            A(S("s_lshl_b32", S_R0, S_R0, "14"))
        else:
            A(S("s_mov_b32", S_R0, "0"))
        A(S("s_mov_b32", S_KO, S_R0))
        A(S("s_mov_b32", S_VO, S_R0))
        if c.touch:
            A(S("s_cmp_lt_u32", S_WAVE, "2"))
            A(S("s_cselect_b32", "s84", "s16", "s20"))
            A(S("s_cselect_b32", "s85", "s17", "s21"))
            A(S("s_and_b32", "s54", S_WAVE, "1"))
            A(S("s_lshl_b32", "s54", "s54", "13"))
            A(S("s_add_u32", "s84", "s84", "s54"))
            A(S("s_addc_u32", "s85", "s85", "0"))
            A(S("s_sub_u32", "s86", hex(524288), "s54"))
            A(S("s_mov_b32", "s87", "0x20000"))
            A(S("s_add_u32", S_TO, S_R0, hex(4 * SLOT)))
            A(S("s_and_b32", S_TO, S_TO, "0x7ffff"))
            A(V("v_lshlrev_b32", "v193", "7", "v0"))
        A(S("s_mov_b32", S_C, fbits(1.4426950408889634 / 16.0)))
        A(S("s_mov_b32", S_HI, fbits(c.thr_hi)))
        A(S("s_mov_b32", S_LO, fbits(c.thr_lo)))
        m, mask = self.kvm()
        if mask == 0x3fff and m == sorted(m):
            A(V("v_lshl_add_u32", v1(VKV), "v2", "9", "v4"))
            A(S("s_lshl_b32", "s54", S_WAVE, "12"))
        else:
            A(V("v_mov_b32", v1(VKV), "v4"))
            for k in range(3):
                A(V("v_bfe_u32", "v5", "v2", str(k), "1"))
                A(V("v_lshl_add_u32", v1(VKV), "v5", str(m[k]), v1(VKV)))
            A(S("s_and_b32", "s54", S_WAVE, "1"))
            A(S("s_lshl_b32", "s54", "s54", str(m[3])))
            A(S("s_lshr_b32", "s55", S_WAVE, "1"))
            A(S("s_lshl_b32", "s55", "s55", str(m[4])))
            A(S("s_add_u32", "s54", "s54", "s55"))
        A(V("v_add_u32", v1(VKV), "s54", v1(VKV)))
        A(S("s_mov_b32", S_CT, S_R0))
        A(V("v_and_b32", "v2", "15", "v0"))
        A(V("v_lshrrev_b32", "v3", "4", "v0"))
        A(V("v_and_b32", "v4", "6", "v0"))
        A(V("v_xor_b32", "v4", "v3", "v4"))
        A(V("v_lshlrev_b32", "v4", "4", "v4"))
        A(V("v_lshl_add_u32", v1(KA), "v2", "7", "v4"))
        A(V("v_xor_b32", v1(KA + 1), "64", v1(KA)))
        A(V("v_add_u32", v1(XA), S_XB, v1(KA)))
        A(V("v_add_u32", v1(XA + 1), S_XB, v1(KA + 1)))
        A(V("v_bfe_u32", "v4", "v0", "2", "2"))
        A(V("v_lshlrev_b32", "v4", "7", "v4"))
        A(V("v_lshl_add_u32", "v4", "v3", "10", "v4"))
        A(V("v_lshrrev_b32", "v5", "1", "v0"))
        A(V("v_and_b32", "v5", "4", "v5"))
        A(V("v_and_or_b32", "v5", "v0", "3", "v5"))
        A(V("v_lshl_add_u32", v1(WLO), "v5", "4", "v4"))
        A(V("v_xor_b32", v1(WLO + 1), "64", v1(WLO)))
        A(V("v_add_u32", v1(WHI), hex(6 * SLOT), v1(WLO)))
        A(V("v_add_u32", v1(WHI + 1), hex(6 * SLOT), v1(WLO + 1)))
        A(V("v_lshrrev_b32", "v4", "2", "v2"))
        A(V("v_lshlrev_b32", "v4", "12" if c.fuse == 2 else "13", "v4"))
        A(V("v_and_b32", "v5", "3", "v0"))
        A(V("v_lshl_add_u32", "v4", "v5", "4", "v4"))
        A(V("v_lshl_add_u32", v1(VS), "v3", "6", "v4"))
        return p

    def wread(self, n, s, blk):
        t, u = blk >> 1, blk & 1
        sl = WSLOT[s]
        areg, base = (WLO, 0) if sl < 4 else (WHI, 6)
        off = (sl - base) * SLOT + (t >> 1) * 4096 + u * 8
        return self.trpair(8 + n % 3, areg + (t & 1), off, 512)

    def xread(self, p, tt, qb):
        return dsr("ds_read_b128", a4(128 + 32 * (p % 4) + 16 * tt + 4 * qb), v1(XA + tt),
                   (p & 1) * 32768 + qb * 2048, tag=f"xr{p}")

    def qacc(self, blk, qb):
        t, u = blk >> 1, blk & 1
        if t < 4:
            return a4(32 * t + 16 * u + 4 * qb)
        return v4(Q(t, qb)) if u == 0 else v4(128 + 16 * (t - 4) + 4 * qb)

    def qk_part(self, sc, base, slot, cinit, ka=KA, kbase=0):
        assert len(sc.m) == base
        for kb in range(2):
            for qb in range(4):
                for t in range(8):
                    buf = t if kb == 0 else (8 + t if t < 2 else t - 2)
                    cc = (v4(CI(qb)) if cinit else "0") if t == 0 else v4(Sx(kb, qb))
                    sc.add(mfma(v4(Sx(kb, qb)), v4(B(buf)), v4(Q(t, qb)), cc))
        sc.at(base + 0, self.kread(8, 1, 0, slot, ka, kbase))
        sc.at(base + 1, self.kread(9, 1, 1, slot, ka, kbase))
        for t in range(2, 8):
            sc.at(base + 22 + t, self.kread(t - 2, 1, t, slot, ka, kbase))

    def softmax(self, sc, base, last_gap, first=False):
        rest = []
        for kb in range(2):
            for qb in range(4):
                g = base + 32 * kb + 8 * qb + 9
                gs = []
                for r in range(4):
                    e = V("v_exp_f32", v1(Sx(kb, qb) + r), v1(Sx(kb, qb) + r))
                    g = sc.find(g, need=2, first=True)
                    if g > last_gap:
                        rest.append(e)
                        gs.append(None)
                    else:
                        sc.at(g, e)
                        gs.append(g)
                s0 = Sx(kb, qb)
                lt = v1(LT0 + qb)
                if kb == 0:
                    adds = [(V("v_add_f32", lt, v1(s0), v1(s0 + 1)), 1), (V("v_add_f32", lt, lt, v1(s0 + 2)), 2),
                            (V("v_add_f32", lt, lt, v1(s0 + 3)), 3)]
                else:
                    adds = [(V("v_add_f32", lt, lt, v1(s0 + r)), r) for r in range(4)]
                for a, r in adds:
                    if gs[r] is None or rest:
                        rest.append(a)
                    else:
                        sc.q('sum', a, early=gs[r] + 1)
        chk = [V("v_max3_f32", v1(TMP), v1(LT0), v1(LT0 + 1), v1(LT0 + 2)),
               V("v_max_f32", v1(TMP), v1(TMP), v1(LT0 + 3)),
               V("v_cmp_lt_f32", "vcc", S_HI, v1(TMP))]
        if first:
            chk += [V("v_min3_f32", v1(TMP), v1(LT0), v1(LT0 + 1), v1(LT0 + 2)),
                    V("v_min_f32", v1(TMP), v1(TMP), v1(LT0 + 3)),
                    V("v_cmp_gt_f32", "s[54:55]", S_LO, v1(TMP)),
                    S("s_or_b64", "vcc", "vcc", "s[54:55]")]
        for a in chk:
            if rest:
                rest.append(a)
            else:
                sc.q('sum', a, early=0)
        return rest

    def cvtP(self, kb, qb, pbase=None):
        d = (P(qb) if pbase is None else pbase + 4 * qb) + 2 * kb
        s = Sx(kb, qb)
        return [V("v_cvt_pk_bf16_f32", v1(d), v1(s), v1(s + 1)), V("v_cvt_pk_bf16_f32", v1(d + 1), v1(s + 2), v1(s + 3))]

    def rare_branch(self, first=False, last=False):
        k = len(self.stubs)
        self.stubs.append((first, last))
        return [br("s_cbranch_vccnz", f"L_stub{k}"), label(f"L_ret{k}")]

    def qproj(self):
        sc = Sched("qproj")
        frs = [(s, blk) for s in range(10) for blk in range(16)] + [(s, blk) for blk in range(16) for s in range(10, 14)]
        done = {}
        for n, (s, blk) in enumerate(frs):
            for j in range(4):
                qb = j if n & 1 else 3 - j
                acc = self.qacc(blk, qb)
                xb = a4(128 + 32 * ((s >> 1) % 4) + 16 * (s & 1) + 4 * qb)
                i = sc.add(mfma(acc, v4(B(8 + n % 3)), xb, "0" if s == 0 else acc))
                if s == 13:
                    done[(blk, qb)] = i
            if n >= 3:
                sc.at(4 * n - 9, *self.wread(n, s, blk))
        base = len(sc.m)
        pre = [vmwait(["W0", "X0"]), bar()]
        pre += self.stamp(200, True)
        for qb in (3, 2, 1, 0):
            pre.append(self.xread(0, 0, qb))
        pre += self.wread(0, *frs[0])
        pre += self.wread(1, *frs[1])
        for qb in range(4):
            pre.append(self.xread(0, 1, qb))
        pre += self.wread(2, *frs[2])
        for s in range(10):
            tags = [f"W{s+1}"] if s < 9 else ["W10", "W11", "W12", "W13", "K0"]
            xr = {1: 1, 3: 2, 4: 3, 5: 4, 6: 5, 7: 6}.get(s)
            if xr is not None:
                tags.append(f"X{xr}")
            if s == 9 and self.c.fuse == 2:
                tags.append("mode")
            sc.sc(64 * s + 53, vmwait(tags), bar())
            if s in (1, 3, 5, 7, 9) and self.c.stamps != 4:
                sc.sc(64 * s + 53, *self.stamp(200))
            if xr is not None:
                gl = [54, 56, 57, 58, 60, 61, 62, 64]
                k = 0
                for tt in range(2):
                    for qb in (3, 2, 1, 0):
                        sc.at(64 * s + gl[k], self.xread(xr, tt, qb))
                        k += 1
        W = lambda s: (self.w_pre(s), self.w_dma(s), [])
        X = lambda p: ([dswait([f"xr{p-2}"])] + self.x_pre(p), self.x_dma(p), [])
        KV = lambda w, t, sl: ([], self.kv_dma(w, t, sl), self.kv_post(w))
        plan = {0: [X(2), W(3)], 2: [W(4), X(3)], 3: [W(5), KV('K', 0, 0)], 4: [W(6), X(4)], 5: [W(7), X(5)],
                6: [W(8), X(6)], 7: [W(9), W(13)], 8: [W(10), W(11), W(12)],
                9: [KV('K', 1, 9)], 10: [KV('V', 0, 4)], 11: [KV('K', 2, 2)], 12: [KV('V', 1, 5)]}
        for s, groups in plan.items():
            self.dma_run(sc, range(64 * s + 5, 64 * s + 53, 4 if s < 9 else 8 if s == 12 else 12), groups)
        for k in range(4, self.c.touch):
            self.put_touch(sc, 64 * min(8, self.c.tstep + k - 4) + 2 + 4 * 12 - (8 if self.c.tstep + k - 4 > 8 else 0) * 0 + 0, 192, 193, f"tc{k}") if False else None
        for k in range(4, self.c.touch):
            st = self.c.tstep + (k - 4)
            assert st <= 8
            self.put_touch(sc, 64 * st + 2, 192, 193, f"tc{k}")
        if self.c.woq:
            g = self.c.woq
            sc.sc(g - 12, S("s_and_b32", "s97", S_B, "3"))
            sc.sc(g - 11, S("s_mul_i32", "s97", "s97", hex(64 * 896)))
            sc.sc(g - 9, S("s_mul_i32", "s89", S_WAVE, hex(8 * 896 - 128)))
            sc.sc(g - 8, S("s_sub_u32", "s97", "s97", "s89"))
            sc.at(g - 7, V("v_mbcnt_lo_u32_b32", "v193", "-1", "0"), V("v_mbcnt_hi_u32_b32", "v193", "-1", "v193"))
            sc.at(g - 5, V("v_mul_u32_u24", "v193", "0x380", "v193"), V("v_add_u32", "v193", "s97", "v193"))
            sc.at(g, gload("v192", "v193", SWO, "0", 0, "wq0", self.c.wotpol, op="buffer_load_dword"))
            sc.at(g + 1, gload("v194", "v193", SWO, "0", 512, "wq1", self.c.wotpol, op="buffer_load_dword"))
        if self.c.wom > 1:
            g = self.c.wom
            sc.sc(g - 12, S("s_lshr_b32", "s97", S_B, "1"))
            sc.sc(g - 11, S("s_mul_i32", "s97", "s97", hex(28672)))
            sc.sc(g - 9, S("s_and_b32", "s89", S_B, "1"))
            sc.sc(g - 8, S("s_mul_i32", "s89", "s89", hex(3584)))
            sc.sc(g - 7, S("s_add_u32", "s97", "s97", "s89"))
            sc.at(g - 7, V("v_mbcnt_lo_u32_b32", "v193", "-1", "0"), V("v_mbcnt_hi_u32_b32", "v193", "-1", "v193"))
            sc.at(g - 5, V("v_min_u32", "v193", "27", "v193"), V("v_lshlrev_b32", "v193", "7", "v193"))
            sc.at(g, gload("v192", "v193", SWO, "s97", 0, "wq0", self.c.wotpol, op="buffer_load_dword"))
        if self.c.pfq:
            g = self.c.pfq
            ad = [V("v_mbcnt_lo_u32_b32", "v200", "-1", "0"), V("v_mbcnt_hi_u32_b32", "v200", "-1", "v200"),
                  V("v_and_b32", "v201", "1", "v200"), V("v_lshlrev_b32", "v201", "7", "v201"),
                  V("v_lshrrev_b32", "v200", "1", "v200"), V("v_lshl_add_u32", "v201", "v200", "12", "v201"),
                  V("v_lshrrev_b32", "v200", "3", "v200"), V("v_lshl_add_u32", "v200", "v200", "15", "v201"),
                  V("v_add_u32", "v201", "0x8000", "v200")]
            for o in ad:
                sc.q('pf', o, early=g - 30, dead=g)
            sc.q('pf', gload("v202", "v200", SWS, "0", 0, "pq0", self.c.pfpol, op="buffer_load_dword"), early=g, dead=g + 2)
            sc.q('pf', gload("v203", "v201", SWS, "0", 0, "pq1", self.c.pfpol, op="buffer_load_dword"), early=g + self.c.pfd,
                 dead=g + self.c.pfd + 2)
        if self.c.fuse == 2:
            g = 64 * 9 + 54
            sc.at(64 * 8 + 51, self.mode_load())
            sc.at(g, V("v_readfirstlane_b32", S_TOK, "v196"), V("v_readfirstlane_b32", "s73", "v197"))
            sc.at(g + 2, V("v_readfirstlane_b32", "s74", "v198"))
            sc.sc(g + 4, *self.mode_test())
            sc.sc(g + 6, S("s_cmp_lg_u32", S_TOK, "0"), S("s_cselect_b32", "s76", "s76", "-1"))
            sc.sc(g + 7, S("s_cmp_lg_u32", "s76", "0"), br("s_cbranch_scc1", "L_mode"), label("L_moder"))
            if self.c.fm:
                sc.sc(g + 8, S("s_mov_b32", "s76", "-1" if self.c.fm == 1 else "0"))
            sc.sc(g + 9, S("s_mov_b32", "s77", "s76"))
        gb = base - 99
        sc.sc(gb, vmwait(["K1"]), bar())
        self.dma_run(sc, range(gb + 40, gb + 90, 12), [KV('K', 3, 3)])
        ti = 0
        for blk in range(16):
            t, u = blk >> 1, blk & 1
            for qb in sorted(range(4), key=lambda q: done[(blk, q)]):
                e = done[(blk, qb)] + 2
                dead = base + 8 * qb + t - 1
                dst = Q(t, qb) + 2 * u
                if t < 4:
                    tm = L0 + 4 * (ti & 1)
                    ti += 1
                    a0 = 32 * t + 16 * u + 4 * qb
                    ops = [V("v_accvgpr_read_b32", v1(tm + r), f"a{a0+r}") for r in range(4)]
                    qn = 'ca'
                else:
                    tm = Q(t, qb) if u == 0 else 128 + 16 * (t - 4) + 4 * qb
                    ops = []
                    qn = f'cv{qb}'
                    if u == 1 and t == 4:
                        dead = min(dead, base + 8 * qb)
                ops += [V("v_mul_f32", v1(tm + r), S_C, v1(tm + r)) for r in range(4)]
                ops += [V("v_cvt_pk_bf16_f32", v1(dst), v1(tm), v1(tm + 1)),
                        V("v_cvt_pk_bf16_f32", v1(dst + 1), v1(tm + 2), v1(tm + 3))]
                for o in ops:
                    sc.q(qn, o, early=e, dead=dead)
        for t in range(8):
            sc.at(base - 12 + t, self.kread(t, 0, t, 0))
        self.qk_part(sc, base, 0, cinit=False)
        for qb in range(4):
            for r in range(4):
                sc.q(f'cv{qb}', V("v_mov_b32", v1(CI(qb) + r), "0"), early=base, dead=base + 64)
        misc = [V("v_add_u32", v1(WHI), hex(8 * SLOT), v1(KA)), V("v_add_u32", v1(WHI + 1), hex(8 * SLOT), v1(KA + 1))]
        for o in misc:
            sc.q('misc', o, early=base - 12, dead=base + 44)
        va = [V("v_mbcnt_lo_u32_b32", v1(VA + 3), "-1", "0"), V("v_mbcnt_hi_u32_b32", v1(VA + 3), "-1", v1(VA + 3)),
              V("v_lshrrev_b32", v1(VA), "2", v1(VA + 3)), V("v_lshlrev_b32", v1(VA), "7", v1(VA)),
              V("v_bfe_u32", v1(VA + 1), v1(VA + 3), "3", "2"), V("v_lshl_add_u32", v1(VA), v1(VA + 1), "5", v1(VA)),
              V("v_and_b32", v1(VA + 1), "3", v1(VA + 3)), V("v_lshl_add_u32", v1(VA), v1(VA + 1), "3", v1(VA)),
              V("v_add_u32", v1(VA), hex(4 * SLOT), v1(VA)),
              V("v_xor_b32", v1(VA + 1), "32", v1(VA)), V("v_xor_b32", v1(VA + 2), "64", v1(VA)),
              V("v_xor_b32", v1(VA + 3), "0x60", v1(VA))]
        for o in va:
            sc.q('misc', o, early=base - 12, dead=base + 64)
        sc.at(base + 45, self.kread(6, 0, 6, 9, WHI, 8 * SLOT))
        sc.at(base + 46, self.kread(7, 0, 7, 9, WHI, 8 * SLOT))
        for t in range(6):
            sc.at(base + 58 + t, self.kread(t, 0, t, 9, WHI, 8 * SLOT))
        for qb in range(4):
            sc.q('ca', V("v_mov_b32", v1(L0 + qb), "0"), early=base, dead=base + 9)
        for k in range(1, 8):
            sc.sc(base + 2 + k, S("s_mov_b32", S_TAB(k), hex(k * 28672)))
        rest = self.softmax(sc, base, base + 63, first=True)
        body = sc.emit()
        print("qproj exposed slots", sc.over, "rest", len(rest))
        post = rest + self.cvtP(0, 0) + self.stamp(key=True) + self.rare_branch(first=True)
        return pre + body + post

    def pv_part(self, sc, tile, first, pbase=None, n0=0):
        base = len(sc.m)
        idx = {}
        for db in range(16):
            for j in range(4):
                qb = j if db & 1 else 3 - j
                pp = P(qb) if pbase is None else pbase + 4 * qb
                idx[(db, qb)] = sc.add(mfma(a4(O(db, qb)), v4(B(8 + (n0 + db + 2) % 3)), v4(pp),
                                            "0" if first else a4(O(db, qb))))
        return idx

    def vread(self, tile, db, n0=0):
        return self.trpair(8 + (n0 + db + 2) % 3, VA + (db & 3), (tile % 4) * SLOT + (db >> 2) * 4096, 2048)

    def iteration(self, i):
        sc = Sched(f"iter{i}")
        T = i + 1
        if i == 0:
            self.qk_part(sc, 0, 9, True, WHI, 8 * SLOT)
        else:
            self.qk_part(sc, 0, T % 4, True)
        self.pv_part(sc, i, i == 0)
        sc.at(50, *self.vread(i, 0))
        sc.at(56, *self.vread(i, 1))
        sc.at(57, *self.vread(i, 2))
        for db in range(3, 16):
            sc.at(55 + 4 * db, *self.vread(i, db))
        if i < 30:
            for t, g in enumerate((104, 105, 108, 109, 112, 113, 116, 117)):
                sc.at(g, self.kread(t, 0, t, (i + 2) % 4))
        else:
            for db in range(3):
                sc.at(119 + 4 * db, *self.vread(31, db, 16))
        KV = lambda w, t, sl: ([], self.kv_dma(w, t, sl), self.kv_post(w))
        TT = lambda c: ([], self.wo_dma(c), self.wo_post())
        tags = [f"V{i}"] + ([f"K{i+2}"] if i < 30 else ["V31"])
        sc.sc(self.c.bg, vmwait(tags, force=8 if 1 <= i <= 28 else None), bar())
        G8 = (77, 81, 85, 89, 93, 97, 101, 106)
        if i <= 28:
            self.dma_run(sc, G8, [KV('V', i + 2, 4 + (i + 2) % 4), KV('K', i + 4, i % 4)])
        elif i == 29:
            self.dma_run(sc, (5, 13, 21, 33) + G8, [KV('V', 31, 7), TT(0)])
        else:
            self.dma_run(sc, (5, 13, 21, 33, 38, 46, 54, 62) + G8, [TT(1), TT(2)])
        if i == 30 and self.c.pfi:
            for o in self.pf_addr():
                sc.q('pf', o, early=0, dead=self.c.pfi)
            x = gload(v1(qPT), v1(qVPF), SWS, "0", 0, "pf0", self.c.pfpol, op="buffer_load_dword")
            x.w = set()
            sc.q('pf', x, early=self.c.pfi, dead=self.c.pfi + 2)
        if i == 30 and self.c.fuse == 1:
            sc.at(70, self.poll("t"))
        if self.c.wot:
            if i == 0:
                for o in (V("v_mbcnt_lo_u32_b32", "v255", "-1", "0"), V("v_mbcnt_hi_u32_b32", "v255", "-1", "v255"),
                          V("v_mul_u32_u24", "v255", "0x380", "v255"), V("v_add_u32", "v255", "s97", "v255")):
                    sc.q('misc', o, early=31, dead=127)
                sc.sc(10, S("s_mul_i32", "s97", S_WAVE, hex(56 * 896)))
                sc.sc(12, S("s_mov_b32", "s89", "0"))
            elif i <= 28 and i % 4 == self.c.wot % 4:
                sc.at(self.c.wotg, gload("v254", "v255", SWO, "s89", 0, f"wt{i}", self.c.wotpol, op="buffer_load_dword"))
                sc.sc(self.c.wotg + 2, S("s_add_u32", "s89", "s89", "128"))
        for k, o in enumerate(self.adv(S_CT, False, None)):
            sc.sc(120 + k, o)
        if self.c.touch:
            if i == 0:
                for k, o in enumerate((V("v_mbcnt_lo_u32_b32", "v255", "-1", "0"), V("v_mbcnt_hi_u32_b32", "v255", "-1", "v255"),
                          V("v_lshlrev_b32", "v255", "7", "v255"))):
                    sc.q('misc', o, early=31, dead=109)
            if i <= 28:
                self.put_touch(sc, 110, 254, 255, f"tc{i + self.c.touch}")
        for k in range(self.c.pad):
            sc.after(3 + (k * 128) // self.c.pad, nop(7))
        for qb in range(4):
            sc.q('sum', V("v_add_f32", v1(L0 + qb), v1(L0 + qb), v1(LT0 + qb)), early=0)
        for kb in range(2):
            for qb in range(4):
                if (kb, qb) != (0, 0):
                    for o in self.cvtP(kb, qb):
                        sc.q('cvt', o, early=0, dead=32 * kb + 8 * qb)
        rest = self.softmax(sc, 0, 120)
        assert not rest
        if i < 30:
            sc.at(124, *self.cvtP(0, 0))
        else:
            for kb in range(2):
                for qb in range(4):
                    for o in self.cvtP(kb, qb, B(0)):
                        sc.q('sum', o, early=64)
        body = sc.emit(flush=False)
        if sc.over:
            print(f"iter {i} over", sc.over)
        return body + self.rare_branch(last=(i == 30))

    def outproj(self):
        c = self.c
        sc = Sched("out")
        pidx = self.pv_part(sc, 31, False, pbase=B(0), n0=16)
        for db in range(3, 16):
            sc.at(4 * db - 9, *self.vread(31, db, 16))
        frs = [(0, tau, nb) for tau in range(8) for nb in range(4)]
        frs += [(cc, tau, nb) for cc in range(1, 7) for nb in range(4) for tau in range(8)]

        def acc(cc, nb, qb):
            if cc == 0:
                return 128 + 16 * nb + 4 * qb
            return (192 if nb % 2 == 0 else 144) + 4 * qb
        win = {0: 8, 1: 0, 2: 0, 3: 4, 4: 4, 5: 8, 6: 0}
        first, lastm, rdgap = {}, {}, {}
        for k, (cc, tau, nb) in enumerate(frs):
            n = 32 + k
            for j in range(4):
                qb = j if n & 1 else 3 - j
                a = v4(acc(cc, nb, qb))
                i = sc.add(mfma(a, v4(B(8 + (n + 2) % 3)), v4(16 * tau + 4 * qb), "0" if tau == 0 else a))
                if tau == 0:
                    first[(cc, nb, qb)] = i
                if tau == 7:
                    lastm[(cc, nb, qb)] = i
                if cc == 0 and nb == 0:
                    first[('o', tau, qb)] = i
            g = 64 + 4 * k - 9
            rdgap[(cc, tau, nb)] = g
            sc.at(g, *self.trpair(8 + (n + 2) % 3, VA + nb, (TSLOT[cc] - win[cc]) * SLOT + tau * 4096, 2048))
        nm = len(sc.m)
        for nb in range(4):
            sc.q('va', V("v_add_u32", v1(VA + nb), hex(4 * SLOT), v1(VA + nb)), early=4 * (12 + nb) - 9,
                 dead=rdgap[(0, 0, nb)])
        for cc in range(6):
            d = (win[cc + 1] - win[cc]) * SLOT
            if d:
                for nb in range(4):
                    op = V("v_add_u32", v1(VA + nb), hex(d), v1(VA + nb)) if d > 0 else \
                        V("v_subrev_u32", v1(VA + nb), hex(-d), v1(VA + nb))
                    sc.q('va', op, early=rdgap[(cc, 7, nb)], dead=rdgap[(cc + 1, 0, nb)])
        TT = lambda cc: ([], self.wo_dma(cc), self.wo_post())
        self.dma_run(sc, range(1, 40, 4), [TT(3)])
        C = lambda cc: 64 + 128 * cc
        sc.sc(C(0) - 11, vmwait(["T0"]), bar())
        sc.sc(C(0) - 11, *self.stamp())
        for k in range(7):
            g = C(k) + c.goff
            tags = ([f"T{k+1}"] if k < 6 else []) + ([f"st{k-2}"] if k >= 2 and c.fuse else [])
            if c.stamps == 4:
                sc.sc(g, *self.stamp())
            if tags:
                sc.sc(g, vmwait(tags), bar())
            if k in (1, 3, 5) or c.stamps == 4:
                sc.sc(g, *self.stamp())
            if k <= 2:
                self.dma_run(sc, range(g + 5 + (c.tdel if k else 0), g + 100, c.tstp), [TT(k + 4)])
            if k >= 2 and c.fuse:
                cc = k - 2
                sc.at(g - 2, V("v_add_u32", v1(FLG), str(cc + 1), v1(TOK)))
                sc.at(g, self.flag_store())
        if c.fuse:
            for cc in range(c.nin):
                gc = nm - 40 - c.isp * (c.nin - 1 - cc)
                gc -= (gc - 2) % 4
                gp = gc - c.cd
                gp -= (gp - 2) % 4
                assert gp > C(cc + 2) + c.goff
                sc.at(gp, self.poll())
                a, b = self.check(cc)
                if c.stamps == 4:
                    sc.sc(gc, *self.stamp())
                    sc.sc(gc + 1, *self.stamp())
                sc.at(gc, *a)
                sc.sc(gc + 2, *b)
                for m, ld in enumerate(self.payload(cc)):
                    sc.at(gc + 4 + 4 * m, ld)
                sc.sc(gc + 33, S("s_add_u32", S_PC, S_PC, hex(32768)))
                sc.sc(gc + 35, S("s_add_u32", S_THR, S_THR, "1"))
            if not c.nin:
                gp = nm - c.cd
                gp -= (gp - 2) % 4
                sc.at(gp, self.poll())
        if c.fuse:
            sc.at(C(0) + 70, V("v_cmp_eq_u32", "vcc", "0", v1(TOK)))
            sc.sc(C(0) + 74, *self.spin_branch("t"))
            sc.at(C(0) + 78, V("v_readfirstlane_b32", S_TOK, v1(TOK)))
            sc.sc(C(0) + 82, S("s_add_u32", S_THR, S_TOK, "1"))
            sc.sc(C(0) + 86, S("s_mov_b32", S_LD, "0"))
            wso = (c.wsoff << 20)
            srd = [[S("s_lshl_b32", "s54", S_B, "10")], [S("s_add_u32", "s54", "s54", hex(wso + FLAGS_OFF))],
                   [S("s_add_u32", "s8", "s70", "s54"), S("s_addc_u32", "s9", "s71", "0")], [S("s_mov_b32", "s10", "64")],
                   [S("s_lshl_b32", "s54", S_B, "4")], [S("s_add_u32", "s54", "s54", S_H)],
                   [S("s_mul_i32", "s54", "s54", hex(229376))], [S("s_lshl_b32", "s55", S_WAVE, "13")],
                   [S("s_add_u32", "s54", "s54", "s55")], [S("s_add_u32", "s54", "s54", hex(wso))],
                   [S("s_add_u32", "s12", "s70", "s54"), S("s_addc_u32", "s13", "s71", "0")],
                   [S("s_mov_b32", S_PC, "0")], [S("s_mov_b32", "s14", NREC)]]
            for k, ops in enumerate(srd):
                sc.sc(C(1) + 2 + 4 * k + (0 if k < 9 else 4), *ops)
        ti = 0
        for db in range(16):
            for qb in sorted(range(4), key=lambda q: pidx[(db, q)]):
                tm = B(4) + 4 * (ti % 4)
                ti += 1
                dst = 16 * (db >> 1) + 4 * qb + 2 * (db & 1)
                ops = [V("v_accvgpr_read_b32", v1(tm + r), f"a{O(db,qb)+r}") for r in range(4)]
                ops += [V("v_cvt_pk_bf16_f32", v1(dst), v1(tm), v1(tm + 1)),
                        V("v_cvt_pk_bf16_f32", v1(dst + 1), v1(tm + 2), v1(tm + 3))]
                for o in ops:
                    sc.q('oc', o, early=pidx[(db, qb)] + 2, dead=first[('o', db >> 1, qb)] - 1)
        fin = [V("v_add_f32", v1(L0 + q), v1(L0 + q), v1(LT0 + q)) for q in range(4)]
        for sw in ("v_permlane32_swap_b32", "v_permlane16_swap_b32"):
            fin += [V("v_mov_b32", v1(LT0 + q), v1(L0 + q)) for q in range(4)]
            fin += [V(sw, v1(L0 + q), v1(LT0 + q)) for q in range(4)]
            fin += [V("v_add_f32", v1(L0 + q), v1(L0 + q), v1(LT0 + q)) for q in range(4)]
        fin += [V("v_rcp_f32", v1(L0 + q), v1(L0 + q)) for q in range(4)]
        for o in fin:
            sc.q('out', o, early=0)

        def conv(cc, nb, dead):
            order = sorted(range(4), key=lambda q: lastm[(cc, nb, q)])
            for qb in order:
                a = acc(cc, nb, qb)
                st = (128 + 16 * (nb & 2) + 4 * qb) if cc == 0 else 128 + 4 * qb
                dst = st + 2 * (nb & 1)
                ops = [V("v_mul_f32", v1(a + r), v1(L0 + qb), v1(a + r)) for r in range(4)]
                ops += [V("v_cvt_pk_bf16_f32", v1(dst), v1(a), v1(a + 1)),
                        V("v_cvt_pk_bf16_f32", v1(dst + 1), v1(a + 2), v1(a + 3))]
                if nb & 1:
                    ops.append(gstore(v4(st), v1(VS), SWS, S_ST(qb), (nb >> 1) * 256, f"st{cc}", c.stpol))
                    if nb == 3:
                        ops.append(S("s_add_u32", S_ST(qb), S_ST(qb), hex(32768)))
                for o in ops:
                    sc.q('out', o, early=lastm[(cc, nb, qb)] + 2, dead=dead(qb))
        INF = 10**9
        conv(0, 0, lambda qb: INF)
        conv(0, 1, lambda qb: first[(1, 1, qb)])
        conv(0, 2, lambda qb: INF)
        conv(0, 3, lambda qb: INF)
        seq = [(cc, nb) for cc in range(1, 7) for nb in range(4)]
        for k, (cc, nb) in enumerate(seq):
            if k + 2 < len(seq):
                conv(cc, nb, lambda qb, nx=seq[k + 2]: first[(nx[0], nx[1], qb)])
            else:
                conv(cc, nb, lambda qb: INF)
            if (cc, nb) == (1, 1) and c.fuse:
                for o in (V("v_mbcnt_lo_u32_b32", v1(VPA), "-1", "0"), V("v_mbcnt_hi_u32_b32", v1(VPA), "-1", v1(VPA)),
                          V("v_add_u32", v1(VFO), S_WAVE, v1(VPA)), V("v_lshlrev_b32", v1(VFO), "12", v1(VFO)),
                          V("v_and_b32", v1(VPO), "15", v1(VPA)), V("v_lshlrev_b32", v1(VPO), "2", v1(VPO)),
                          V("v_lshlrev_b32", v1(VPA), "4", v1(VPA)), V("v_add_u32", v1(VPB), hex(4096), v1(VPA))):
                    sc.q('out', o, early=0, dead=C(2) + c.goff)
        body = sc.emit()
        print("outproj exposed slots", sc.over)
        return self.stamp(key=True) + body + (self.tail() if c.fuse else [])

    def flag_store(self, tag="fl"):
        return gstore(v1(FLG), v1(VFO), SFL, S_H4, 0, tag, "sc1", op="buffer_store_dword")

    def poll(self, cc=0):
        if cc == "t":
            return Ins(f"buffer_load_dword v{TOK}, off, {SDBG}, 0 sc1", 'G', regs(SDBG), [v1(TOK)], tag="tokr")
        return gload(v1(POLL), v1(VPO), SFL, "0", 0, "pl", "sc1", op="buffer_load_dword")

    def check(self, cc):
        return ([V("v_subrev_u32", v1(PT), S_THR, v1(POLL)), V("v_cmp_lt_u32", "vcc", str(6 - cc), v1(PT))],
                [S("s_cmp_eq_u64", "vcc", "0"), S("s_cselect_b32", "s14", "s14", "0"),
                 S("s_cselect_b32", S_LD, str(cc + 1), S_LD)] if cc == 0 else
                [S("s_cmp_eq_u64", "vcc", "0"), S("s_cselect_b32", "s14", "s14", "0"), S("s_cmp_lg_u32", "s14", "0"),
                 S("s_cselect_b32", S_LD, str(cc + 1), S_LD)])

    def spin_branch(self, cc):
        self.spins.append(cc)
        return [br("s_cbranch_vccnz", f"L_spin{cc}"), label(f"L_sret{cc}")]

    def spin_stubs(self):
        p = []
        for cc in self.spins:
            p += [label(f"L_spin{cc}"), S("s_mov_b32", S_SPIN, "0x20000"), label(f"L_spinl{cc}"), raw(self.poll(cc).t),
                  raw("s_waitcnt vmcnt(0)"), raw(f"v_cmp_eq_u32 vcc, 0, v{TOK}"), nop(4),
                  br("s_cbranch_vccz", f"L_sret{cc}"), raw("s_sleep 1"), S("s_sub_u32", S_SPIN, S_SPIN, "1"),
                  S("s_cmp_lg_u32", S_SPIN, "0"), br("s_cbranch_scc1", f"L_spinl{cc}"), br("s_branch", f"L_sret{cc}")]
        return p

    def payload(self, cc):
        return [gload(a4(32 * cc + 4 * m), v1(VPA if m < 4 else VPB), SPL, S_PC, (m & 3) * 1024, f"pp{cc}", "sc1")
                for m in range(8)]

    def red_chunk(self, cc):
        d = RD + 4 * (cc & 1)
        p = [mfma(v4(d), v4(RI), a4(32 * cc + 4 * m), "0" if m == 0 else v4(d)) for m in range(8)]
        e = RC + 2 * cc
        cv = [V("v_cvt_pk_bf16_f32", v1(e), v1(d), v1(d + 1)), V("v_cvt_pk_bf16_f32", v1(e + 1), v1(d + 2), v1(d + 3))]
        st = gstore(v2(e), v1(VOO), SOUT, "0", cc * 128, f"o{cc}", op="buffer_store_dwordx2")
        return p, cv, st

    def tail(self):
        c = self.c
        p = []
        A = p.append
        p += self.stamp()
        A(V("v_add_u32", v1(FLG), "6", v1(TOK)))
        prog = [V("v_subrev_u32", v1(PT), S_TOK, v1(POLL)), V("v_cmp_lt_u32", "vcc", "7", v1(PT)), nop(1),
                Ins(f"v_cndmask_b32 v{PT}, v{PT}, 0, vcc", 'V', [v1(PT), "vcc"], [v1(PT)])]
        p += [vmwait(["st5", "pl"]), bar(), self.flag_store()] + prog
        A(V("v_add_u32", v1(FLG + 2), "7", v1(TOK)))
        raws = lambda l: [raw(x.t) if x.k in 'MVG' else x for x in l]
        t0, t1, t2 = RD, RD + 1, RD + 2
        mk = ("s[54:55]", "s[56:57]", "s[58:59]", "vcc")
        setup = [V("v_lshrrev_b32", v1(t0), "4", v1(VPA)), V("v_and_b32", v1(VOO), "3", v1(t0)),
                 V("v_mul_u32_u24", v1(VOO), "0x380", v1(VOO)), V("v_lshrrev_b32", v1(t1), "4", v1(t0)),
                 V("v_lshl_add_u32", v1(VOO), v1(t1), "5", v1(VOO)), V("v_bfe_u32", v1(t2), v1(t0), "2", "2"),
                 V("v_lshl_add_u32", v1(VOO), v1(t2), "3", v1(VOO)),
                 V("v_and_b32", v1(t0), "15", v1(t0)), V("v_and_b32", v1(t1), "1", v1(t1)),
                 V("v_lshlrev_b32", v1(t1), "3", v1(t1)), V("v_sub_u32", v1(t0), v1(t0), v1(t1)),
                 V("v_and_b32", v1(t1), "1", v1(t0)), V("v_lshlrev_b32", v1(t1), "4", v1(t1)),
                 V("v_mov_b32", v1(t2), "0x3f80"), V("v_lshlrev_b32", v1(t1), v1(t1), v1(t2)),
                 V("v_ashrrev_i32", v1(t0), "1", v1(t0))]
        setup += [V("v_cmp_eq_u32", mk[r], str(r), v1(t0)) for r in range(4)] + [nop(1)]
        setup += [V("v_cndmask_b32", v1(RI + r), "0", v1(t1), mk[r]) for r in range(4)]
        fl7 = gstore(v1(FLG + 2), v1(VFO), SFL, S_H4, 0, "fl", "sc1", op="buffer_store_dword")
        notready = lambda k: [V("v_cmp_gt_u32", "vcc", str(k + 1), v1(PT)), nop(3)]
        ld = lambda k: [S("s_mov_b32", S_PC, hex(32768 * k))] + self.payload(k)
        q = [S("s_mov_b32", "s14", NREC), S("s_mov_b32", S_SPIN, "0x40000")]
        for k in range(c.nin):
            q += [S("s_cmp_eq_u32", S_LD, str(k)), br("s_cbranch_scc1", f"L_a{k}")]
        for k in range(c.nin, -1, -1):
            q += [label(f"L_a{k}")] + notready(k) + [br("s_cbranch_vccnz", f"L_b{k}")] + ld(k) + setup
            q += [raw("s_waitcnt vmcnt(9)"), bar(), fl7, br("s_branch", f"L_c{k+1}"), label(f"L_b{k}")] + setup
            q += [raw("s_waitcnt vmcnt(1)"), bar(), fl7, br("s_branch", f"L_w{k}")]
        for k in range(7):
            q += [label(f"L_w{k}"), self.poll(), raw("s_waitcnt vmcnt(0)")] + prog
            q += [S("s_sub_u32", S_SPIN, S_SPIN, "1"), S("s_cmp_eq_u32", S_SPIN, "0"), br("s_cbranch_scc1", "L_pe")]
            q += notready(k) + [br("s_cbranch_vccz", f"L_r{k}"), raw(f"s_sleep {c.slp}"), br("s_branch", f"L_w{k}")]
            q += [label(f"L_c{k}")] + notready(k) + [br("s_cbranch_vccnz", f"L_w{k}"), label(f"L_r{k}")]
            if k < 6:
                q += notready(k + 1) + [br("s_cbranch_vccz", f"L_n{k}"), self.poll()] + ld(k)
                q += [raw("s_waitcnt vmcnt(8)")] + prog + [br("s_branch", f"L_c{k+1}"), label(f"L_n{k}")] + ld(k)
                q += [br("s_branch", f"L_r{k+1}")]
            else:
                q += ld(k)
        q += [label("L_pe")]
        q += self.stamp()
        ns = 2 if c.stamps else 0
        prev = []
        for k in range(7):
            m, cv, st = self.red_chunk(k)
            q += [raw(f"s_waitcnt vmcnt({8 * (6 - k) + max(k - 1, 0) + ns})")] + m[:3] + prev + m[3:]
            prev = cv + [st]
        q += [nop(7)] + prev
        return p + raws(q)

    def pf_addr(self):
        return [V("v_mbcnt_lo_u32_b32", v1(qVPF), "-1", "0"), V("v_mbcnt_hi_u32_b32", v1(qVPF), "-1", v1(qVPF)),
                V("v_and_b32", v1(qPT), "1", v1(qVPF)), V("v_lshlrev_b32", v1(qPT), "7", v1(qPT)),
                V("v_lshrrev_b32", v1(qVPF), "1", v1(qVPF)), V("v_lshl_add_u32", v1(qPT), v1(qVPF), "12", v1(qPT)),
                V("v_lshrrev_b32", v1(qVPF), "3", v1(qVPF)), V("v_lshl_add_u32", v1(qVPF), v1(qVPF), "15", v1(qPT))]

    def mode_load(self):
        return Ins(f"buffer_load_dwordx3 v[196:198], off, {SDBG}, 0 sc1", 'G', regs(SDBG), regs("v[196:198]"), tag="mode")

    def mode_test(self):
        return [S("s_cmp_eq_u32", "s73", S_PC), S("s_cselect_b32", "s76", "0", "-1"),
                S("s_cmp_eq_u32", "s74", S_PC), S("s_cselect_b32", "s76", "s76", "-1")]

    def r_flag(self, k, pol=""):
        return gstore(v1(qFLG), v1(qVFO), SFL, S_H4, 0, f"fl{k}", pol, op="buffer_store_dword")

    def r_publish(self, k):
        return [S("s_cmp_lg_u32", "s76", "0"), br("s_cbranch_scc1", f"L_fb{k}_"), self.r_flag(k), label(f"L_fbr{k}_")]

    def r_poll(self, k):
        return gload(v1(qPOLL), v1(qVPO), SFL, "0", 0, f"pl{k}", "sc1", op="buffer_load_dword")

    def r_test(self, k):
        return [V("v_subrev_u32", v1(qPT), S_THR, v1(qPOLL)), V("v_cmp_lt_u32", "vcc", str(12 - k), v1(qPT))]

    def r_branch(self, k):
        return [S("s_or_b64", "vcc", "vcc", "s[76:77]"), br("s_cbranch_vccnz", f"L_sp{k}_"), label(f"L_spr{k}_"),
                S("s_add_u32", S_THR, S_THR, "1")]

    def r_payload(self, cc, half):
        p = [gload(a4(32 * cc + 16 * half + 4 * m), v1(qVPA), SPL, S_PC, m * 1024, f"pp{cc}h{half}", "sc1") for m in range(4)]
        return p + [S("s_xor_b32", S_PC, S_PC, "0xc000" if half else "0x4000")]

    def r_reduce(self, cc):
        p = [mfma(v4(qRD), v4(qRI + 12 * (m >> 2)), a4(32 * cc + 4 * m), "0" if m == 0 else v4(qRD)) for m in range(8)]
        cv = [V("v_cvt_pk_bf16_f32", v1(qRC), v1(qRD), v1(qRD + 1)), V("v_cvt_pk_bf16_f32", v1(qRC + 1), v1(qRD + 2), v1(qRD + 3))]
        st = gstore(v2(qRC), v1(qVOO), SOUT, "0", cc * 128, f"o{cc}", self.c.rdpol, op="buffer_store_dwordx2")
        return p, cv, st

    def ring_stubs(self):
        rw = lambda x: raw(x.t)
        p = [label("L_mode"), S("s_mov_b32", S_SPIN, "0x20000"), label("L_model"), rw(self.mode_load()),
             raw("s_waitcnt vmcnt(0)"), raw(f"v_readfirstlane_b32 {S_TOK}, v196"), raw("v_readfirstlane_b32 s73, v197"),
             raw("v_readfirstlane_b32 s74, v198"), nop(4)]
        for r, d in (("s73", "s54"), ("s74", "s55")):
            p += [S("s_lshr_b32", d, r, "2"), S("s_or_b32", d, d, r), S("s_lshr_b32", "s56", d, "1"), S("s_or_b32", d, d, "s56")]
        p += [S("s_and_b32", "s54", "s54", "s55"), S("s_and_b32", "s54", "s54", "0x11111111"),
              S("s_cmp_lg_u32", S_TOK, "0"), S("s_cselect_b32", "s54", "s54", "0"),
              S("s_cmp_eq_u32", "s54", "0x11111111"), br("s_cbranch_scc1", "L_moded"), raw("s_sleep 2"),
              S("s_sub_u32", S_SPIN, S_SPIN, "1"), S("s_cmp_lg_u32", S_SPIN, "0"), br("s_cbranch_scc1", "L_model"),
              label("L_moded")] + self.mode_test() + [br("s_branch", "L_moder")]
        for k in range(1, 13):
            p += [label(f"L_fb{k}_"), raw("buffer_wbl2 sc1"), raw("s_waitcnt vmcnt(0)"), rw(self.r_flag(k, "sc1")),
                  raw("s_waitcnt vmcnt(0)"), br("s_branch", f"L_fbr{k}_")]
            p += [label(f"L_sp{k}_")] + ([S("s_bitset1_b32", "s97", str(k))] if self.c.stamps == 5 else [])
            p += [S("s_mov_b32", S_SPIN, "0x40000"), label(f"L_spl{k}_"), rw(self.r_poll(k)),
                  raw("s_waitcnt vmcnt(0)")] + [rw(x) for x in self.r_test(k)] + [nop(4),
                  br("s_cbranch_vccz", f"L_spd{k}_")] + ([raw(f"s_sleep {self.c.slp}")] if self.c.slp else []) + [
                  S("s_sub_u32", S_SPIN, S_SPIN, "1"),
                  S("s_cmp_lg_u32", S_SPIN, "0"), br("s_cbranch_scc1", f"L_spl{k}_"), label(f"L_spd{k}_"),
                  S("s_cmp_eq_u32", "s76", "0"), br("s_cbranch_scc1", f"L_spr{k}_"), raw("buffer_inv sc1"),
                  raw("s_waitcnt vmcnt(0)"), br("s_branch", f"L_spr{k}_")]
        return p

    def outproj2(self):
        c = self.c
        head = self.stamp(key=True)
        self.quiet = True
        sc = Sched("out")
        pidx = self.pv_part(sc, 31, False, pbase=B(0), n0=16)
        for db in range(3, 16):
            sc.at(4 * db - 9, *self.vread(31, db, 16))
        frs = [(0, tau, nb) for tau in range(8) for nb in range(4)]
        frs += [(cc, tau, nb) for cc in range(1, 7) for nb in range(4) for tau in range(8)]

        def acc(cc, nb, qb):
            if cc == 0:
                return 128 + 16 * nb + 4 * qb
            return (192 if nb % 2 == 0 else 144) + 4 * qb
        win = {0: 8, 1: 0, 2: 0, 3: 4, 4: 4, 5: 8, 6: 0}
        first, lastm, rdgap, Cs, red = {}, {}, {}, {}, {}
        for k, (cc, tau, nb) in enumerate(frs):
            n = 32 + k
            if k % 32 == 0:
                Cs[cc] = len(sc.m)
            if k % 32 == c.rpos and cc >= 2:
                for m in self.r_reduce(cc - 2)[0]:
                    red[cc - 2] = sc.add(m)
            g = len(sc.m) - 9
            for j in range(4):
                qb = j if n & 1 else 3 - j
                a = v4(acc(cc, nb, qb))
                i = sc.add(mfma(a, v4(B(8 + (n + 2) % 3)), v4(16 * tau + 4 * qb), "0" if tau == 0 else a))
                if tau == 0:
                    first[(cc, nb, qb)] = i
                if tau == 7:
                    lastm[(cc, nb, qb)] = i
                if cc == 0 and nb == 0:
                    first[('o', tau, qb)] = i
            rdgap[(cc, tau, nb)] = g
            sc.at(g, *self.trpair(8 + (n + 2) % 3, VA + nb, (TSLOT[cc] - win[cc]) * SLOT + tau * 4096, 2048))
        nm = len(sc.m)
        C = lambda cc: Cs[cc]
        for nb in range(4):
            sc.q('va', V("v_add_u32", v1(VA + nb), hex(4 * SLOT), v1(VA + nb)), early=4 * (12 + nb) - 9,
                 dead=rdgap[(0, 0, nb)])
        for cc in range(6):
            d = (win[cc + 1] - win[cc]) * SLOT
            if d:
                for nb in range(4):
                    op = V("v_add_u32", v1(VA + nb), hex(d), v1(VA + nb)) if d > 0 else \
                        V("v_subrev_u32", v1(VA + nb), hex(-d), v1(VA + nb))
                    sc.q('va', op, early=rdgap[(cc, 7, nb)], dead=rdgap[(cc + 1, 0, nb)])
        TT = lambda cc: ([], self.wo_dma(cc), self.wo_post())
        tpos = dict(x.split(":") for x in c.tpos.split(","))
        for t in range(3, 7):
            if tpos[str(t)][0] != 'u':
                g = int(tpos[str(t)])
                assert t == 3 or (t == 4 and g > C(0) + c.goff)
                self.dma_run(sc, [x for x in range(g, g + 100) if sc.free(x) == 2][::c.tsp0], [TT(t)])
        sc.sc(C(0) - 11, vmwait(["T0"]), bar())
        sc.sc(C(0) - 11, *self.stamp())
        wso = (c.wsoff << 20)
        srd = [[S("s_lshl_b32", "s54", S_B, "10")], [S("s_add_u32", "s54", "s54", hex(wso + FLAGS_OFF))],
               [S("s_add_u32", "s8", "s70", "s54"), S("s_addc_u32", "s9", "s71", "0")], [S("s_mov_b32", "s10", "0x100")],
               [S("s_lshl_b32", "s54", S_B, "4")], [S("s_add_u32", "s54", "s54", S_H)],
               [S("s_lshl_b32", "s54", "s54", "16")], [S("s_lshl_b32", "s55", S_WAVE, "12")],
               [S("s_add_u32", "s54", "s54", "s55")], [S("s_add_u32", "s54", "s54", hex(wso))],
               [S("s_add_u32", "s12", "s70", "s54"), S("s_addc_u32", "s13", "s71", "0")],
               [S("s_mov_b32", S_PC, "0")], [S("s_mov_b32", "s14", hex(49152 + 4096))],
               [S("s_add_u32", S_THR, S_TOK, "1")], [S("s_add_u32", S_H4, S_H4, S_WAVE)], [S("s_lshl_b32", S_H4, S_H4, "2")]]
        for k, ops in enumerate(srd):
            sc.sc(C(0) + 62 + 4 * k, *ops)
        if c.stamps == 5:
            sc.sc(C(0), S("s_mov_b32", "s97", "0"))
        st4 = lambda g: sc.sc(g, *self.stamp()) if c.stamps == 4 else None
        g = C(0) + c.goff
        sc.sc(g, vmwait(["T1"]), bar())
        for gg, nn in ((0, "s"), (C(0) - 12, "t0"), (C(0) - 10, "T0"), (g - 1, "g0"), (g + 1, "G0"), (nm - 8, "e")):
            self.lst(sc, gg, nn)
        Wd = {2 * k + hf: C(k) if hf == 0 else lastm[(k, 1, 0)] // 4 * 4 + 4 for k in range(1, 7) for hf in range(2)}
        chk, pol = {}, {}
        for u in range(2, 14):
            k, hf, W = u >> 1, u & 1, Wd[u]
            sh = c.sh4 if u == 4 else 0
            g = W + c.p1 + sh
            tags = [] if u == 2 else ["st0h0", "st0h1"] if u == 3 else [f"st{(u-2)>>1}h{u&1}"]
            if u >= 4:
                tags.append(f"pp{(u-4)>>1}h{u&1}")
            if hf == 0 and k < 6:
                tags.append(f"T{k+1}")
            if u < 6:
                self.lst(sc, W + 1, f"W{u}")
            self.lst(sc, g - 1, f"w{u}")
            self.lst(sc, g + 1, f"P{u}")
            sc.sc(g, vmwait(tags))
            if u > 2:
                sc.q('fl', V("v_add_u32", v1(qFLG), "1", v1(qFLG)), early=g - 30, dead=g)
                sc.sc(g, *self.r_publish(u - 2))
            if hf == 0 and k < 6:
                sc.sc(g, bar())
            if hf == 0 and k in (1, 3, 5):
                sc.sc(g, *self.stamp())
            if u >= 4:
                gl = chk[u - 1] + (c.lo if u > 4 else 1)
                for x in (self.r_payload(0, 0) if u == 4 else []) + self.r_payload((u - 3) >> 1, (u - 3) & 1):
                    if x.k == 'S':
                        sc.sc(gl0 + 1, x)
                        continue
                    gl = sc.find(gl, need=1)
                    sc.at(gl, x)
                    gl0 = gl
                    gl += 2 if x.tag == "pp0h0" else c.isp
            gp = g
            if u > 2:
                gp = sc.find(W + c.p2 + sh, need=1)
                sc.at(gp, self.r_poll(u - 2))
                pol[u] = gp
                gc = sc.find(W + c.p3 + sh, need=2)
                self.lst(sc, gc - 1, f"c{u}")
                self.lst(sc, gc + 3, f"C{u}")
                sc.at(gc, *self.r_test(u - 2))
                sc.sc(gc + 2, *self.r_branch(u - 2))
                chk[u] = gc + 2
            for t in range(3, 7):
                if tpos[str(t)] == f"u{u}":
                    assert u >= 2 * (t - 4) and u < 2 * (t - 1)
                    gs = [x for x in range(gp + 2, gp + 70) if sc.free(x) == 2][::c.tsp]
                    self.dma_run(sc, gs, [TT(t)])
        ti = 0
        for db in range(16):
            for qb in sorted(range(4), key=lambda q: pidx[(db, q)]):
                tm = B(4) + 4 * (ti % 4)
                ti += 1
                dst = 16 * (db >> 1) + 4 * qb + 2 * (db & 1)
                ops = [V("v_accvgpr_read_b32", v1(tm + r), f"a{O(db,qb)+r}") for r in range(4)]
                ops += [V("v_cvt_pk_bf16_f32", v1(dst), v1(tm), v1(tm + 1)),
                        V("v_cvt_pk_bf16_f32", v1(dst + 1), v1(tm + 2), v1(tm + 3))]
                for o in ops:
                    sc.q('oc', o, early=pidx[(db, qb)] + 2, dead=first[('o', db >> 1, qb)] - 1)
        lane = [V("v_mbcnt_lo_u32_b32", v1(qVPF), "-1", "0"), V("v_mbcnt_hi_u32_b32", v1(qVPF), "-1", v1(qVPF))]
        if c.ttg:
            g = c.ttg
            ad = lane + [V("v_and_b32", v1(qPT), "7", v1(qVPF)), V("v_lshrrev_b32", v1(qVPF), "3", v1(qVPF)),
                         V("v_mul_u32_u24", v1(qVPF), hex(28672), v1(qVPF)), V("v_mul_u32_u24", v1(qPT), "0x380", v1(qPT)),
                         V("v_add_u32", v1(qVPF), v1(qVPF), v1(qPT))]
            for o in ad:
                sc.q('pf', o, early=-1, dead=g)
            adv = 0 if g > 36 else 1
            assert g > 36 or g <= 24
            for t in range(c.tt0, 3):
                sc.q('pf', gload(v1(qPOLL), v1(qVPF), SWO, "0", 128 * (t + adv), f"tt{t}", c.wotpol, op="buffer_load_dword"),
                     early=g + 2 * t, dead=g + 2 * t + 2)
        if c.pf0:
            for o in self.pf_addr():
                sc.q('pf', o, early=-1, dead=c.pf0)
            sc.q('pf', gload(v1(qPOLL), v1(qVPF), SWS, "0", 0, "pf0", c.pfpol, op="buffer_load_dword"), early=c.pf0, dead=c.pf0 + 2)
        if c.pf1:
            sc.q('pf', V("v_add_u32", v1(qVPF), "0x8000", v1(qVPF)), early=max(c.pf0, 0), dead=c.pf1)
            sc.q('pf', gload(v1(qPOLL), v1(qVPF), SWS, "0", 0, "pf1", c.pfpol, op="buffer_load_dword"), early=c.pf1, dead=c.pf1 + 2)
        fin = [V("v_add_f32", v1(L0 + q), v1(L0 + q), v1(LT0 + q)) for q in range(4)]
        for sw in ("v_permlane32_swap_b32", "v_permlane16_swap_b32"):
            fin += [V("v_mov_b32", v1(LT0 + q), v1(L0 + q)) for q in range(4)]
            fin += [V(sw, v1(L0 + q), v1(LT0 + q)) for q in range(4)]
            fin += [V("v_add_f32", v1(L0 + q), v1(L0 + q), v1(LT0 + q)) for q in range(4)]
        fin += [V("v_rcp_f32", v1(L0 + q), v1(L0 + q)) for q in range(4)]
        fin += [V("v_mbcnt_lo_u32_b32", v1(qVPA), "-1", "0"), V("v_mbcnt_hi_u32_b32", v1(qVPA), "-1", v1(qVPA)),
                V("v_lshlrev_b32", v1(qVFO), "12", v1(qVPA)), V("v_lshlrev_b32", v1(qVPO), "2", v1(qVPA)),
                V("v_and_b32", v1(qVOO), "3", v1(qVPA)), V("v_mul_u32_u24", v1(qVOO), "0x380", v1(qVOO)),
                V("v_lshrrev_b32", v1(qVPB), "4", v1(qVPA)), V("v_lshl_add_u32", v1(qVOO), v1(qVPB), "5", v1(qVOO)),
                V("v_bfe_u32", v1(qVPB), v1(qVPA), "2", "2"), V("v_lshl_add_u32", v1(qVOO), v1(qVPB), "3", v1(qVOO)),
                V("v_lshlrev_b32", v1(qVPA), "4", v1(qVPA)), V("v_mov_b32", v1(qFLG), S_TOK)]
        for o in fin:
            sc.q('out', o, early=0, dead=C(1))

        def conv(cc, nb, dead):
            order = sorted(range(4), key=lambda q: lastm[(cc, nb, q)])
            for n, qb in enumerate(order):
                a = acc(cc, nb, qb)
                st = 128 + 16 * (nb & 2) + 4 * qb
                dst = st + 2 * (nb & 1)
                ops = [V("v_mul_f32", v1(a + r), v1(L0 + qb), v1(a + r)) for r in range(4)]
                ops += [V("v_cvt_pk_bf16_f32", v1(dst), v1(a), v1(a + 1)),
                        V("v_cvt_pk_bf16_f32", v1(dst + 1), v1(a + 2), v1(a + 3))]
                e = lastm[(cc, nb, qb)] + 2
                sto = [gstore(v4(st), v1(VS), SWS, S_ST(qb), 0, f"st{cc}h{nb>>1}", c.stpol),
                       S("s_xor_b32", S_ST(qb), S_ST(qb), "0xc000" if nb == 3 else "0x4000")]
                u = 2 * cc + (nb >> 1) + 1
                if nb & 1 and (cc == 0 or u == 14):
                    ops += sto
                for o in ops:
                    sc.q('out', o, early=e, dead=dead(qb))
                if nb & 1 and cc > 0 and u < 14:
                    gs = max(Wd[u] + c.so + 5 * n, max(Wd[u] + c.so, chk.get(u - 1, 0) + 1) + (c.ssp if u < 13 else c.sspl) * n)
                    gs = sc.find(gs, need=1)
                    for it in sc.queues['out'][-6:]:
                        it[2] = min(it[2], gs)
                    sc.at(gs, sto[0])
                    sc.sc(gs + 1, sto[1])
        INF = 10**9
        conv(0, 0, lambda qb: INF)
        conv(0, 1, lambda qb: first[(1, 1, qb)])
        conv(0, 2, lambda qb: INF)
        conv(0, 3, lambda qb: INF)
        t0, t1, t2 = qRD, qRD + 1, qRD + 2
        mk = ("s[54:55]", "s[56:57]", "s[58:59]", "s[74:75]")
        setup = [V("v_bfe_u32", v1(t1), v1(qVPA), "4", "1"), V("v_lshlrev_b32", v1(t1), "4", v1(t1)),
                 V("v_mov_b32", v1(t2), "0x3f80"), V("v_lshlrev_b32", v1(t1), v1(t1), v1(t2)),
                 V("v_bfe_u32", v1(t0), v1(qVPA), "5", "3")]
        for hf in range(2):
            setup += [V("v_cmp_eq_u32", mk[r], str(r + 4 * hf), v1(t0)) for r in range(4)]
            setup += [V("v_cndmask_b32", v1(qRI + 12 * hf + r), "0", v1(t1), mk[r]) for r in range(4)]
        seq = [(cc, nb) for cc in range(1, 7) for nb in range(4)]
        for k, (cc, nb) in enumerate(seq):
            if k + 2 < len(seq):
                conv(cc, nb, lambda qb, nx=seq[k + 2]: first[(nx[0], nx[1], qb)])
            else:
                conv(cc, nb, lambda qb: INF)
            if (cc, nb) == (1, 1):
                for o in setup:
                    sc.q('out', o, early=0, dead=C(2) + 4 * c.rpos - 4)
        for cc in range(5):
            _, cv, st = self.r_reduce(cc)
            for o in cv:
                sc.q('rd', o, early=red[cc] + 2, dead=red[cc] + 12)
            g = max(red[cc] + 12, pol[2 * cc + 5] + 1)
            sc.q('rd', st, early=g, dead=g + 4)
        body = sc.emit()
        print("outproj exposed slots", sc.over)
        def tl(n):
            if c.stamps != 5:
                return []
            k = len(self.lnames)
            self.lnames.append((nm + k, n))
            return [raw("s_memtime s[60:61]"), raw("s_waitcnt lgkmcnt(0)"), raw(f"v_writelane_b32 v244, s60, {k}")]
        p = self.stamp() + tl("f") + self.r_payload(5, 1)
        p += [V("v_add_u32", v1(qFLG), "1", v1(qFLG)), vmwait(["st6h1"])] + self.r_publish(12)
        p += tl("P")
        m, cv, st = self.r_reduce(5)
        p += m[:c.tdel] + [self.r_poll(12)] + m[c.tdel:] + cv + [st] + self.r_test(12) + [nop(4)] + self.r_branch(12)
        p += tl("C")
        m, cv, st = self.r_reduce(6)
        p += self.r_payload(6, 0) + self.r_payload(6, 1) + m + cv + [st]
        tg, ok, pb = {S_ST(q): 0 for q in range(4)}, 0, 0
        tg[S_PC] = 0
        for x in body + p:
            if x.k == 'S' and x.t.startswith("s_xor_b32"):
                tg[x.t.split()[1][:-1]] += 1
            if x.k == 'J' and "L_sp" in x.t:
                ok += 1
            if x.k == 'J' and "L_fb" in x.t:
                pb += 1
            if x.k == 'G' and x.tag.startswith("st"):
                u = 2 * int(x.tag[2]) + int(x.tag[4])
                assert tg[x.t.split()[4]] == u and (u < 4 or ok >= u - 2) and pb < max(min(u, 12), 1), x.t
            if x.k == 'G' and x.tag.startswith("pp"):
                u = 2 * int(x.tag[2]) + int(x.tag[4])
                assert tg[S_PC] == u and ok >= max(min(u, 12), 1) and (pb < u + 2 or u >= 11), x.t
            if x.k == 'G' and x.tag[:2] in ("tt", "pf"):
                x.w = set()
        return head + body + p

    def rare(self):
        p = []
        A = p.append
        for k, (first, last) in enumerate(self.stubs):
            A(label(f"L_stub{k}"))
            A(S("s_mov_b32", S_RET, str(k)))
            A(S("s_and_b32", S_RT, S_CT, "0x7ffff"))
            A(br("s_branch", "L_rare"))
        A(label("L_rare"))
        A(nop(15))
        A(waitall('vm', 'lg'))
        T, F, U = 160, 164, 168
        A(V("v_mbcnt_lo_u32_b32", v1(U), "-1", "0"))
        A(V("v_mbcnt_hi_u32_b32", v1(U), "-1", v1(U)))
        m, mask = self.kvm()
        A(V("v_lshrrev_b32", v1(TMP), "4", v1(U)))
        A(V("v_lshlrev_b32", v1(TMP), "4", v1(TMP)))
        for k in range(4):
            A(V("v_bfe_u32", v1(U + 1), v1(U), str(k), "1"))
            A(V("v_lshl_add_u32", v1(TMP), v1(U + 1), str(m[k]), v1(TMP)))
        A(S("s_add_u32", S_T1, S_RT, hex(1 << m[4])))
        lds = [gload(v4(B(8 + n % 3)), v1(TMP), SK, S_RT if n < 8 else S_T1, (n & 7) * 64, f"r{n}") for n in range(16)]
        A(lds[0])
        A(lds[1])
        for n in range(16):
            if n + 2 < 16:
                A(lds[n + 2])
            kb, t = n >> 3, n & 7
            for qb in range(4):
                A(mfma(v4(Sx(kb, qb)), v4(B(8 + n % 3)), v4(Q(t, qb)), "0" if t == 0 else v4(Sx(kb, qb))))
        for qb in range(4):
            s0, s1 = Sx(0, qb), Sx(1, qb)
            A(V("v_max3_f32", v1(T + qb), v1(s0), v1(s0 + 1), v1(s0 + 2)))
            A(V("v_max3_f32", v1(T + qb), v1(T + qb), v1(s0 + 3), v1(s1)))
            A(V("v_max3_f32", v1(T + qb), v1(T + qb), v1(s1 + 1), v1(s1 + 2)))
            A(V("v_max_f32", v1(T + qb), v1(T + qb), v1(s1 + 3)))
        for sw in ("v_permlane32_swap_b32", "v_permlane16_swap_b32"):
            for qb in range(4):
                A(V("v_mov_b32", v1(U + qb), v1(T + qb)))
            for qb in range(4):
                A(V(sw, v1(T + qb), v1(U + qb)))
            for qb in range(4):
                A(V("v_max_f32", v1(T + qb), v1(T + qb), v1(U + qb)))
        for qb in range(4):
            A(V("v_ceil_f32", v1(T + qb), v1(T + qb)))
        A(S("s_cmp_eq_u32", S_RET, "0"))
        A(br("s_cbranch_scc1", "L_rare_noscale"))
        for qb in range(4):
            A(V("v_max_f32", v1(T + qb), v1(T + qb), "-" + v1(CI(qb))))
        for qb in range(4):
            A(V("v_sub_f32", v1(F + qb), "-" + v1(CI(qb)), v1(T + qb)))
        for qb in range(4):
            A(V("v_exp_f32", v1(F + qb), v1(F + qb)))
        for qb in range(4):
            A(V("v_mul_f32", v1(L0 + qb), v1(L0 + qb), v1(F + qb)))
        for db in range(16):
            for qb in range(4):
                for r in range(4):
                    A(V("v_accvgpr_read_b32", v1(U + r), f"a{O(db,qb)+r}"))
                for r in range(4):
                    A(V("v_mul_f32", v1(U + r), v1(U + r), v1(F + qb)))
                for r in range(4):
                    A(V("v_accvgpr_write_b32", f"a{O(db,qb)+r}", v1(U + r)))
        A(label("L_rare_noscale"))
        for qb in range(4):
            for r in range(4):
                A(V("v_sub_f32", v1(CI(qb) + r), "0", v1(T + qb)))
        for kb in range(2):
            for qb in range(4):
                for r in range(4):
                    A(V("v_add_f32", v1(Sx(kb, qb) + r), v1(Sx(kb, qb) + r), v1(CI(qb))))
                for r in range(4):
                    A(V("v_exp_f32", v1(Sx(kb, qb) + r), v1(Sx(kb, qb) + r)))
        for qb in range(4):
            s0, s1, lt = Sx(0, qb), Sx(1, qb), v1(LT0 + qb)
            A(V("v_add_f32", lt, v1(s0), v1(s0 + 1)))
            for x in (s0 + 2, s0 + 3, s1, s1 + 1, s1 + 2, s1 + 3):
                A(V("v_add_f32", lt, lt, v1(x)))
        p += self.cvtP(0, 0)
        for k, (first, last) in enumerate(self.stubs):
            if last:
                continue
            A(S("s_cmp_eq_u32", S_RET, str(k)))
            A(br("s_cbranch_scc1", f"L_ret{k}"))
        k = [j for j, s in enumerate(self.stubs) if s[1]][0]
        for kb in range(2):
            for qb in range(4):
                p += self.cvtP(kb, qb, B(0))
        for db in range(3):
            p += self.vread(31, db, 16)
        A(waitall('lg'))
        A(nop(3))
        A(br("s_branch", f"L_ret{k}"))
        return p

    def stamps_out(self):
        if not self.c.stamps:
            return []
        self.quiet = False
        p = [waitall('vm')] + self.stamp(reg=1, key=True)
        if self.c.stamps == 5:
            print("LNAMES", sorted((g, n, k) for k, (g, n) in enumerate(self.lnames)))
            import json
            json.dump(sorted((g, n, k) for k, (g, n) in enumerate(self.lnames)), open(self.c.outp + ".json", "w"))
            p += [raw("v_writelane_b32 v244, s100, 62"), raw("v_writelane_b32 v244, s97, 63"), raw("v_mbcnt_lo_u32_b32 v223, -1, 0"), raw("v_mbcnt_hi_u32_b32 v223, -1, v223"),
                  raw("v_lshlrev_b32 v223, 2, v223"), raw("s_lshl_b32 s54, s2, 2"), raw("s_add_u32 s54, s54, s3"),
                  raw("s_lshl_b32 s54, s54, 8"), raw("s_add_u32 s54, s54, 0x80000"),
                  raw("buffer_store_dword v244, v223, s[92:95], s54 offen")]
        if self.c.stamps == 3:
            return p + [raw("v_mov_b32 v244, s98"), raw("buffer_atomic_umax v244, off, s[92:95], 0 offset:60")]
        p += [raw("v_mov_b32 v1, 0"), raw("buffer_store_dword v1, off, s[92:95], s96")]
        return p

    def main_kernel(self):
        marks = {}
        prog = self.prologue() + self.qproj()
        for i in range(31):
            prog.append(label(f"@it{i}"))
            its = self.iteration(i)
            prog += its
            if i == 0:
                prog += self.stamp()
        prog.append(label("@it31"))
        prog += (self.outproj2() if self.c.fuse == 2 else self.outproj()) + self.stamps_out() + [waitall('vm')]
        prog = insert_waits(prog, verbose=True)
        prog, nfix = check_hazards(prog)
        print("hazard fixes in main:", nfix)
        pos = {i.t[1:-1]: k for k, i in enumerate(prog) if i.k == 'L' and i.t.startswith('@')}
        def seg(i):
            return prog[pos[f"it{i}"] + 1:pos[f"it{i+1}"]]
        def norm(s):
            return [x.t for x in s if x.k not in ('L', 'J')]
        for i in range(1, 25):
            assert norm(seg(i)) == norm(seg(i + 4)), f"iteration {i} and {i+4} differ"
        out = prog[:pos["it0"]] + seg(0)
        out.append(S("s_mov_b32", S_LOOP, "7"))
        out.append(raw(".p2align 6", 'L'))
        out.append(label("L_loop"))
        for i in range(1, 5):
            sg = seg(i)
            if 'g' in self.c.abl:
                sg = [x for x in sg if x.k != 'G']
            if 'd' in self.c.abl:
                sg = [x for x in sg if x.k != 'D']
            if 'k' in self.c.abl:
                sg = [x for x in sg if not x.t.startswith('ds_read_b128')]
            if 'v' in self.c.abl:
                sg = [x for x in sg if x.k not in ('V', 'T')]
            if 't' in self.c.abl:
                sg = [x for x in sg if x.k != 'T']
            if self.c.abl:
                sg = [x for x in sg if x.k != 'J']
                sg.append(br("s_cbranch_execz", f"L_stub{i+1}"))
            out += sg
            if self.c.stamps == 2 and i < 4:
                out += self.stamp()
        out += self.stamp() if self.c.stamps != 4 else []
        out += [S("s_sub_u32", S_LOOP, S_LOOP, "1"), S("s_cmp_lg_u32", S_LOOP, "0"), br("s_cbranch_scc1", "L_loop")]
        out += seg(29) + seg(30) + prog[pos["it31"] + 1:]
        used = sorted(int(x.t.split("L_stub")[1]) for x in out if x.k == 'J' and "L_stub" in x.t)
        remap = {k: j for j, k in enumerate(used)}
        for x in out:
            if x.k == 'J' and "L_stub" in x.t:
                x.t = f"s_cbranch_vccnz L_stub{remap[int(x.t.split('L_stub')[1])]}"
            if x.k == 'L' and x.t.startswith("L_ret"):
                x.t = f"L_ret{remap[int(x.t[5:-1])]}:"
        self.stubs = [self.stubs[k] for k in used]
        out.append(label("L_end"))
        out.append(raw("s_endpgm"))
        r = insert_waits(self.rare() + (self.ring_stubs() if self.c.fuse == 2 else self.spin_stubs()))
        r, _ = check_hazards(r, verbose=False)
        return out + r + [label("L_code_end")]

    def reduce_kernel(self):
        c = self.c
        p = []
        A = p.append
        A(S("s_cmp_ge_u32", "s2", "0x100"))
        A(br("s_cbranch_scc1", "L_rend"))
        A(raw("s_load_dwordx2 s[4:5], s[0:1], 56"))
        A(raw("s_load_dwordx2 s[6:7], s[0:1], 40"))
        A(V("v_lshrrev_b32", "v1", "6", "v0"))
        A(V("v_and_b32", "v0", "63", "v0"))
        A(V("v_readfirstlane_b32", "s3", "v1"))
        A(V("v_lshlrev_b32", "v2", "4", "v0"))
        A(S("s_lshl_b32", "s16", "s3", "13"))
        A(V("v_add_u32", "v2", "s16", "v2"))
        A(S("s_mul_i32", "s17", "s2", hex(229376)))
        if c.wsoff:
            A(S("s_add_u32", "s17", "s17", hex(c.wsoff << 20)))
        A(raw("s_waitcnt lgkmcnt(0)"))
        A(S("s_add_u32", "s8", "s4", "s17"))
        A(S("s_addc_u32", "s9", "s5", "0"))
        A(S("s_mov_b32", "s10", hex(229376)))
        A(S("s_mov_b32", "s11", "0x20000"))
        for n in range(56):
            A(S("s_mov_b32", "s18", hex((n >> 3) * 32768 + (n & 7) * 1024)))
            A(gload(v4(16 + 4 * n), "v2", "s[8:11]", "s18", 0, f"p{n}", c.rdpol))
        A(S("s_mul_i32", "s17", "s2", hex(16 * 896)))
        A(S("s_mul_i32", "s16", "s3", hex(4 * 896)))
        A(S("s_add_u32", "s17", "s17", "s16"))
        A(S("s_add_u32", "s12", "s6", "s17"))
        A(S("s_addc_u32", "s13", "s7", "0"))
        A(S("s_mov_b32", "s14", hex(4 * 896)))
        A(S("s_mov_b32", "s15", "0x20000"))
        A(V("v_and_b32", "v3", "3", "v0"))
        A(V("v_mul_u32_u24", "v3", "0x380", "v3"))
        A(V("v_lshrrev_b32", "v4", "4", "v0"))
        A(V("v_lshl_add_u32", "v3", "v4", "5", "v3"))
        A(V("v_bfe_u32", "v5", "v0", "2", "2"))
        A(V("v_lshl_add_u32", "v3", "v5", "3", "v3"))
        A(V("v_and_b32", "v5", "15", "v0"))
        A(V("v_and_b32", "v4", "1", "v4"))
        A(V("v_lshlrev_b32", "v4", "3", "v4"))
        A(V("v_sub_u32", "v5", "v5", "v4"))
        A(V("v_and_b32", "v6", "1", "v5"))
        A(V("v_lshlrev_b32", "v6", "4", "v6"))
        A(V("v_mov_b32", "v7", "0x3f80"))
        A(V("v_lshlrev_b32", "v6", "v6", "v7"))
        A(V("v_ashrrev_i32", "v5", "1", "v5"))
        for r in range(4):
            A(V("v_cmp_eq_u32", "vcc", str(r), "v5"))
            A(nop(1))
            A(Ins(f"v_cndmask_b32 v{8+r}, 0, v6, vcc", 'V', ["v6", "vcc"], [f"v{8+r}"]))
        for cc in range(7):
            d = 240 + 4 * (cc & 1)
            for m in range(8):
                A(mfma(v4(d), v4(8), v4(16 + 4 * (cc * 8 + m)), "0" if m == 0 else v4(d)))
            e = 248 + 2 * (cc & 1)
            A(V("v_cvt_pk_bf16_f32", v1(e), v1(d), v1(d + 1)))
            A(V("v_cvt_pk_bf16_f32", v1(e + 1), v1(d + 2), v1(d + 3)))
            A(gstore(v2(e), "v3", "s[12:15]", "0", cc * 128, f"o{cc}", op="buffer_store_dwordx2"))
        A(waitall('vm'))
        p = insert_waits(p)
        p, _ = check_hazards(p, verbose=False)
        return p + [label("L_rend"), raw("s_endpgm")]


HEADER = open("cdna_kernels/" + NAME + ".s.ref").read().split("; Override launch")[0]


def kd(name, vgpr, accum):
    return f""".p2align 6
.amdhsa_kernel {name}
  .amdhsa_next_free_vgpr {vgpr}
  .amdhsa_next_free_sgpr 102
  .amdhsa_accum_offset {accum}
  .amdhsa_group_segment_fixed_size 0
  .amdhsa_kernarg_size 64
  .amdhsa_user_sgpr_count 2
  .amdhsa_user_sgpr_kernarg_segment_ptr 1
  .amdhsa_system_sgpr_workgroup_id_x 1
.end_amdhsa_kernel
"""


def generate(cfg):
    g = Gen(cfg)
    main = text(g.main_kernel())
    red = text(g.reduce_kernel())
    k1, k2 = NAME + "_kernel", "mha_reduce_kernel"
    main = main.replace("CODE_SPAN", f"L_code_end-{k1}-256")
    o = HEADER
    if cfg.fuse:
        o += "; @launch grid=(256,1,1) block=(256,1,1) lds=163840\n"
        o += '.amdgcn_target "amdgcn-amd-amdhsa--gfx950"\n.text\n'
        o += f".globl {k1}\n.p2align 8\n.type {k1},@function\n{k1}:\n{main}"
        return o + '.section .rodata,"a"\n' + kd(k1, 512, 256)
    o += f"; @launch kernel={k1} grid=(256,1,1) block=(256,1,1) lds=163840\n"
    o += f"; @launch kernel={k2} grid=(256,1,1) block=(256,1,1) lds=0\n"
    for k in range(cfg.xred):
        o += f"; @launch kernel={k2} grid=(256,1,1) block=(256,1,1) lds=0\n"
    o += '.amdgcn_target "amdgcn-amd-amdhsa--gfx950"\n.text\n'
    for n, body in ((k1, main), (k2, red)):
        o += f".globl {n}\n.p2align 8\n.type {n},@function\n{n}:\n{body}"
    o += '.section .rodata,"a"\n' + kd(k1, 512, 256) + kd(k2, 256, 256)
    return o


if __name__ == "__main__":
    cfg = Cfg()
    out = "cdna_kernels/" + NAME + ".s"
    for a in sys.argv[1:]:
        k, v = a.split("=", 1)
        if k == "out":
            out = v
        else:
            old = getattr(cfg, k)
            setattr(cfg, k, (v == "1") if isinstance(old, bool) else type(old)(v))
    cfg.outp = out
    open(out, "w").write(generate(cfg))
    print("wrote", out)
```
